```python
import torch

def _softmax(x, axis=-1):
    return torch.softmax(x, dim=axis)

def _gelu(x):
    return torch.nn.functional.gelu(x, approximate='tanh')

def _silu(x):
    return torch.nn.functional.silu(x)

def _sigmoid(x):
    return torch.sigmoid(x)

def _layernorm(x, axis=-1, eps=1e-05):
    m = x.mean(dim=axis, keepdim=True)
    v = x.var(dim=axis, keepdim=True, unbiased=False)
    return (x - m) / torch.sqrt(v + eps)

def _scatter_add(tgt, idx, src, axis=0):
    return tgt.clone().index_add_(axis, idx, src)

def _segment_sum(src, seg, n):
    out = torch.zeros((n,) + src.shape[1:], dtype=src.dtype)
    return out.index_add_(0, seg, src)

def _pad(x, pw):
    flat = tuple((v for pair in reversed(pw) for v in pair))
    return torch.nn.functional.pad(x, flat)
kernel_name = 'interleave_layers__memory_aug_recurrent_mem_tr__dense_activation_relu__prompt'

def setup_inputs():

    _w = lambda a: (lambda t: t.to(torch.bfloat16) if t.is_floating_point() else t)(torch.as_tensor(a))

    def _A_setup():
        B, S, Dm = (1, 2048, 512)
        H, Dh = (32, 128)
        M, seg = (8, 32)
        seg = min(seg, S)
        S = S // seg * seg
        return {'x': _w((lambda *s: torch.randn(*s, dtype=torch.bfloat16) * 0.05)(B, S, Dm)), 'mem0': _w((lambda *s: torch.randn(*s, dtype=torch.bfloat16) * 0.8)(B, M, Dm)), 'Wq': _w((lambda *s: torch.randn(*s, dtype=torch.bfloat16) * 0.8)(Dm, H, Dh) * Dm ** (-0.5)), 'Wk': _w((lambda *s: torch.randn(*s, dtype=torch.bfloat16) * 0.8)(Dm, H, Dh) * Dm ** (-0.5)), 'Wv': _w((lambda *s: torch.randn(*s, dtype=torch.bfloat16) * 0.8)(Dm, H, Dh) * Dm ** (-0.5)), 'Wo': _w((lambda *s: torch.randn(*s, dtype=torch.bfloat16) * 0.8)(H, Dh, Dm) * (H * Dh) ** (-0.5)), 'seg_len': seg}
    _A_in = _A_setup()

    def _B_setup():
        B, S, D, Dff = (1, 2048, 512, 1376)
        return {'x': _w((lambda *s: torch.randn(*s, dtype=torch.bfloat16) * 0.05)(B, S, D)), 'w1': _w((lambda *s: torch.randn(*s, dtype=torch.bfloat16) * 0.05)(D, Dff)), 'w2': _w((lambda *s: torch.randn(*s, dtype=torch.bfloat16) * 0.05)(Dff, D))}
    _B_in = _B_setup()
    return {'A_x': _A_in['x'], 'A_mem0': _A_in['mem0'], 'A_Wq': _A_in['Wq'], 'A_Wk': _A_in['Wk'], 'A_Wv': _A_in['Wv'], 'A_Wo': _A_in['Wo'], 'A_seg_len': _A_in['seg_len'], 'B_x': _B_in['x'], 'B_w1': _B_in['w1'], 'B_w2': _B_in['w2']}

def reference(A_x, A_mem0, A_Wq, A_Wk, A_Wv, A_Wo, A_seg_len, B_x, B_w1, B_w2):

    def _A_ref(x, mem0, Wq, Wk, Wv, Wo, seg_len):
        B, S, Dm = x.shape
        H, Dh = (Wq.shape[1], Wq.shape[2])
        M = mem0.shape[1]
        scale = Dh ** (-0.5)
        n_seg = S // seg_len
        L = M + seg_len
        idx = torch.arange(L)
        mask = (idx[:, None] < M) | (idx[:, None] >= idx[None, :])
        mem = mem0
        outs = []
        for s in range(n_seg):
            xs = x[:, s * seg_len:(s + 1) * seg_len, :].clone()
            h = torch.concatenate([mem, xs], axis=1)
            q = torch.einsum('btd,dhe->bhte', h, Wq)
            k = torch.einsum('btd,dhe->bhte', h, Wk)
            v = torch.einsum('btd,dhe->bhte', h, Wv)
            scores = torch.einsum('bhqe,bhke->bhqk', q, k) * scale
            scores = torch.where(mask[None, None], scores, -1000000000.0)
            p = _softmax(scores, axis=-1)
            o = torch.einsum('bhqk,bhke->bhqe', p, v)
            o = torch.einsum('bhte,hed->btd', o, Wo)
            mem = o[:, :M, :].clone()
            outs.append(o[:, M:, :])
        return torch.concatenate(outs, axis=1)

    def _B_ref(x, w1, w2):
        h = torch.einsum('bsd,df->bsf', x, w1)
        zero = torch.zeros_like(h)
        h = torch.maximum(h, zero)
        return torch.einsum('bsf,fd->bsd', h, w2)
    x = A_x
    x = x + _A_ref(_layernorm(x, axis=-1), A_mem0, A_Wq, A_Wk, A_Wv, A_Wo, A_seg_len)
    x = x + _B_ref(_layernorm(x, axis=-1), B_w1, B_w2)
    x = x + _A_ref(_layernorm(x, axis=-1), A_mem0, A_Wq, A_Wk, A_Wv, A_Wo, A_seg_len)
    x = x + _B_ref(_layernorm(x, axis=-1), B_w1, B_w2)
    return x
```

```python
import re

def vr(b, n=1, t='v'):
    return f"{t}{b}" if n == 1 else f"{t}[{b}:{b+n-1}]"
def ar(b, n=1): return vr(b, n, 'a')
def sr(b, n=1): return vr(b, n, 's')

_REG = re.compile(r'^(-|abs\()?([vas])(?:(\d+)|\[(\d+):(\d+)\])\)?$')
def parse_reg(tok):
    tok = tok.strip()
    if tok in ('vcc',): return [('s', 106), ('s', 107)]
    if tok == 'vcc_lo': return [('s', 106)]
    if tok == 'vcc_hi': return [('s', 107)]
    if tok == 'exec': return [('s', 126), ('s', 127)]
    if tok == 'exec_lo': return [('s', 126)]
    if tok == 'exec_hi': return [('s', 127)]
    if tok == 'm0': return [('s', 124)]
    m = _REG.match(tok)
    if not m: return []
    t = m.group(2)
    if m.group(3) is not None: return [(t, int(m.group(3)))]
    return [(t, i) for i in range(int(m.group(4)), int(m.group(5)) + 1)]

TRANS = ('v_exp_f32', 'v_log_f32', 'v_rcp_f32', 'v_rsq_f32', 'v_sqrt_f32', 'v_sin_f32', 'v_cos_f32')
VCC = [('s', 106), ('s', 107)]
EXEC = [('s', 126), ('s', 127)]

class Ins:
    __slots__ = ('text', 'op', 'cls', 'defs', 'uses', 'srcA', 'srcB', 'srcC', 'passes', 'dpp', 'states',
                 'stdata', 'label', 'target', 'lds_dma')
    def __init__(self, text):
        self.text = text
        self.label = None; self.target = None
        self.defs = []; self.uses = []; self.srcA = []; self.srcB = []; self.srcC = []
        self.passes = 0; self.dpp = False; self.states = 1; self.stdata = []; self.lds_dma = False
        t = text.split(';')[0].strip()
        if t.endswith(':'):
            self.cls = 'label'; self.op = ''; self.label = t[:-1]; self.states = 0; return
        if t.startswith('.') or t == '':
            self.cls = 'dir'; self.op = ''; self.states = 0; return
        parts = t.split(None, 1)
        op = parts[0]; self.op = op
        rest = parts[1] if len(parts) > 1 else ''
        ops = [o.strip() for o in rest.split(',')] if rest else []
        mods = ''
        if ops:
            last = ops[-1].split(None, 1)
            ops[-1] = last[0]
            mods = last[1] if len(last) > 1 else ''
        if 'op_sel' in rest or 'neg_lo' in rest or 'neg_hi' in rest or 'quad_perm' in rest:
            m = re.search(r'\s(op_sel|neg_lo|neg_hi|quad_perm)', rest)
            head = rest[:m.start()]; mods = rest[m.start():]
            ops = [o.strip() for o in head.split(',')]
            last = ops[-1].split(None, 1); ops[-1] = last[0]
            if len(last) > 1: mods = last[1] + mods
        R = [parse_reg(o) for o in ops]
        base = re.sub(r'_(e32|e64|dpp|sdwa)$', '', op)
        if op.startswith('v_mfma') or op.startswith('v_smfmac'):
            self.cls = 'mfma'
            self.passes = 8 if '32x32' in op else 4
            if '_f32' == op[-4:] and op.startswith('v_mfma_f32_16x16x4'): self.passes = 8
            self.defs = R[0]; self.srcA = R[1]; self.srcB = R[2]
            if op.startswith('v_smfmac'):
                self.srcC = R[0]; self.srcB = R[2] + R[3]
            else:
                self.srcC = R[3]
            self.uses = self.srcA + self.srcB + self.srcC
        elif op.startswith('v_'):
            self.cls = 'trans' if base in TRANS else 'valu'
            self.dpp = op.endswith('_dpp') or 'row_' in mods or 'quad_perm' in mods
            if base.startswith('v_cmp'):
                self.defs = R[0] + (EXEC if base.startswith('v_cmpx') else []); self.uses = sum(R[1:], [])
            elif base in ('v_permlane32_swap_b32', 'v_permlane16_swap_b32', 'v_swap_b32'):
                self.defs = R[0] + R[1]; self.uses = R[0] + R[1]
            elif base in ('v_add_co_u32', 'v_sub_co_u32', 'v_addc_co_u32', 'v_subb_co_u32', 'v_mad_u64_u32', 'v_div_scale_f32'):
                self.defs = R[0] + R[1]; self.uses = sum(R[2:], [])
            elif base == 'v_nop':
                pass
            else:
                self.defs = R[0]; self.uses = sum(R[1:], [])
                if base in ('v_fmac_f32', 'v_dot2c_f32_bf16', 'v_writelane_b32') or self.dpp: self.uses = self.uses + R[0]
        elif op.startswith('ds_'):
            self.cls = 'ds'
            if op.startswith('ds_read') or op.startswith('ds_bpermute') or op.startswith('ds_permute') or op.startswith('ds_swizzle') or '_rtn' in op:
                self.defs = R[0]; self.uses = sum(R[1:], [])
            else:
                self.uses = sum(R, [])
        elif op.startswith('global_') or op.startswith('buffer_') or op.startswith('flat_'):
            self.cls = 'vmem'
            toks = mods.split()
            if 'lds' in toks or '_lds_' in op:
                self.lds_dma = True; self.uses = sum(R, []) + [('s', 124)]
            elif '_load' in op:
                self.defs = R[0]; self.uses = sum(R[1:], [])
            elif '_atomic' in op:
                if 'sc0' in toks and op.startswith('global_'):
                    self.defs = R[0]; self.uses = sum(R[1:], [])
                else:
                    self.uses = sum(R, [])
                    if 'sc0' in toks: self.defs = R[0]
            else:
                self.uses = sum(R, [])
                if 'x3' in op or 'x4' in op:
                    self.stdata = R[1] if op.startswith('global_') else R[0]
        elif op.startswith('s_'):
            self.cls = 'salu'
            if op == 's_nop':
                self.states = int(ops[0], 0) + 1
            elif op.startswith('s_cbranch') or op == 's_branch':
                self.cls = 'branch'; self.target = ops[0]
            elif op in ('s_waitcnt', 's_barrier', 's_endpgm', 's_sleep', 's_setprio'):
                pass
            elif op.startswith('s_cmp') or op.startswith('s_bitcmp'):
                self.uses = sum(R, [])
            else:
                self.defs = R[0] + (EXEC if 'saveexec' in op else []); self.uses = sum(R[1:], [])
        else:
            raise ValueError("unknown instruction: " + text)

def _ov(a, b):
    return bool(set(a) & set(b))
def _v(regs): return [r for r in regs if r[0] in 'va']
def _s(regs): return [r for r in regs if r[0] == 's']

def required(p, c):
    need = 0
    pv = p.cls in ('valu', 'trans')
    cv = c.cls in ('valu', 'trans')
    if pv:
        vd = _v(p.defs); sd = _s(p.defs)
        if c.cls == 'mfma' and _ov(vd, c.uses): need = max(need, 2)
        if c.cls == 'mfma' and _ov(sd, EXEC): need = max(need, 4)
        if cv:
            if c.dpp and _ov(vd, c.uses): need = max(need, 2)
            if c.dpp and _ov(sd, EXEC): need = max(need, 5)
            if c.op.startswith('v_permlane') and _ov(vd, c.uses): need = max(need, 2)
            if c.op.startswith('v_permlane') and _ov(sd, EXEC): need = max(need, 4)
            if c.op.startswith(('v_readlane', 'v_readfirstlane')) and _ov(vd, c.uses): need = max(need, 1)
            if c.op.startswith(('v_readlane', 'v_readfirstlane', 'v_writelane')) and _ov(sd, EXEC): need = max(need, 4)
            if c.op.startswith(('v_readlane', 'v_writelane')) and _ov(sd, c.uses): need = max(need, 4)
            if _ov(sd, c.uses): need = max(need, 2)
            if c.op.startswith('v_div_fmas') and _ov(sd, VCC): need = max(need, 4)
            if p.cls == 'trans' and c.cls != 'trans' and _ov(vd, c.uses): need = max(need, 1)
        if p.cls == 'trans' and c.cls in ('vmem', 'ds') and _ov(vd, c.uses): need = max(need, 1)
        if c.cls == 'vmem' and _ov(sd, c.uses): need = max(need, 5)
    if p.cls == 'mfma':
        full = {4: 8, 8: 12, 16: 20}[p.passes]
        if c.cls == 'mfma':
            if _ov(p.defs, c.srcA + c.srcB): need = max(need, full)
            if _ov(p.defs, c.srcC):
                if not (p.defs == c.srcC and p.passes == c.passes): need = max(need, full - 2)
            elif _ov(p.defs, c.defs): need = max(need, full - 2)
        elif cv or c.cls in ('vmem', 'ds'):
            if _ov(p.defs, c.uses + c.defs): need = max(need, full)
            if cv and _ov(p.srcC, c.defs): need = max(need, {4: 3, 8: 7, 16: 15}[p.passes])
    if p.stdata and _ov(p.stdata, c.defs): need = max(need, 2 if cv else 1)
    if p.cls == 'salu' and _ov(p.defs, [('s', 124)]) and c.lds_dma: need = max(need, 1)
    return need

WIN = 24
class Asm:
    def __init__(self):
        self.ins = []
        self.nlab = 0
        self.padded = 0
    def __call__(self, text):
        for line in text.split('\n'):
            if line.strip(): self.emit(line.strip())
    def emit(self, text):
        c = Ins(text)
        if c.cls not in ('label', 'dir'):
            need = self._need(self.ins, c)
            if need > 0:
                self.padded += need
                while need > 0:
                    k = min(need, 16); self.ins.append(Ins(f"s_nop {k-1}")); need -= k
        self.ins.append(c)
    @staticmethod
    def _need(hist, c):
        seq = []
        dist = 0
        for p in reversed(hist):
            if p.cls in ('label', 'dir'): continue
            if p.op in ('s_branch', 's_endpgm'): break
            seq.append(p); dist += p.states
            if dist >= WIN: break
        seq.reverse()
        need = 0
        for k, p in enumerate(seq):
            r = required(p, c)
            if r == 0: continue
            t = 0; lastm = (0, p.passes) if p.cls == 'mfma' else None
            prev = p
            for q in seq[k+1:] + [c]:
                t += prev.states
                if q.cls == 'mfma' and q is not c:
                    if lastm is not None: t = max(t, lastm[0] + lastm[1])
                    lastm = (t, q.passes)
                elif q is c and c.cls == 'mfma' and lastm is not None:
                    if lastm[0] + lastm[1] >= r + 1: t = max(t, lastm[0] + lastm[1])
                prev = q
            need = max(need, r + 1 - t)
        return need
    def label(self, name): self.emit(name + ':')
    def newlabel(self, stem='L'):
        self.nlab += 1
        return f"{stem}_{self.nlab}"
    def check_branches(self):
        labels = {i.label: k for k, i in enumerate(self.ins) if i.cls == 'label'}
        probs = []
        for k, b in enumerate(self.ins):
            if b.cls != 'branch' or b.target not in labels: continue
            hist = []
            j = k
            d = 0
            while j >= 0 and d < WIN:
                p = self.ins[j]
                if j != k and p.op in ('s_branch', 's_endpgm'): break
                hist.insert(0, p); d += p.states; j -= 1
            hist = [Ins('s_nop 0') if h.op == 's_branch' else h for h in hist]
            j = labels[b.target]; d = 0
            while j < len(self.ins) and d < WIN:
                c = self.ins[j]
                if c.cls not in ('label', 'dir'):
                    n = self._need(hist, c)
                    if n > 0: probs.append((b.text, c.text, n))
                    if c.op in ('s_branch', 's_endpgm'): break
                    hist.append(c); d += c.states
                j += 1
        return probs
    def text(self):
        out = []
        for i in self.ins:
            out.append(i.text if i.cls in ('label', 'dir') else '  ' + i.text)
        return '\n'.join(out) + '\n'

def interleave(main, fill, slots):
    out = []; k = 0
    for i, m in enumerate(main):
        out.append(m)
        n = slots(i) if callable(slots) else slots
        for _ in range(n):
            if k < len(fill): out.append(fill[k]); k += 1
    out += fill[k:]
    return out
```

```python
from asmlib import *
from layout import *

L_W = 0
L_MEM = 4*18*2048
L_SX = L_MEM + 8192
L_Q = L_SX + 1024
L_K = L_Q + 4096
assert L_SX + 8192 == 163840 and L_MEM % 8192 == 0
LB = L_MEM

MEM = 0; QF = 32; KF = 40; QZ = 48
B = [56 + 4*i for i in range(9)]
KX = 92; OF = KX; VP = 100
L16, ALW, AQW, AQR, AQZ, AKR, AOW, AW, AHB, IDX, AKW, IDX2 = range(116, 128)
LZ = 128

def placement(nq_lds=4):
    ops = []
    for m in 'qkv':
        for i in range(8):
            for t in range(2): ops.append((m, t, i))
    oorder = [('o', 0, 0), ('o', 1, 0), ('o', 0, 1), ('o', 1, 1)] + [('o', t, kk) for t in range(2, 8) for kk in range(2)]
    ops += oorder
    qlds = [('q', t, i) for i in range(7, -1, -1) for t in (1, 0)][:nq_lds]
    olds = oorder[:6] + oorder[6+nq_lds:]
    place = {}
    for k, o in enumerate(qlds + olds + [('v', 0, 0), ('v', 1, 0)]): place[o] = ('l', k)
    regs = [('a', 8*i) for i in range(32)] + [('v', 144 + 8*i) for i in range(14)]
    k = 0
    for o in ops:
        if o not in place:
            place[o] = regs[k]; k += 1
    assert k == 46
    return place, oorder

sStep, sTag, sHAld, sHAst, sHBst, sHBld, sKV, sFKV, sKM, sRdy, sTmp, sTmp2, sSpin, sCs = range(S_T0, S_T0 + 14)
sMaskLo = 64
sMaskHi = 66
sNF, sNK = 68, 69
sKMo, sKMt = 46, 47
sSt = 70
SPIN = 1 << 22

def put_operand(A, dst, srcs, tmp):
    kind, base = dst
    for j, (r1, r0, sel) in enumerate(srcs):
        if kind == 'v': A(f"v_perm_b32 v{base+j}, v{r1}, v{r0}, s{sel}")
        else: A(f"v_perm_b32 v{tmp+j}, v{r1}, v{r0}, s{sel}")
    if kind == 'a':
        for j in range(8): A(f"v_accvgpr_write_b32 a{base+j}, v{tmp+j}")
    if kind == 'l':
        A(f"ds_write_b128 v{AW}, {vr(tmp,4)} offset:{base*2048}")
        A(f"ds_write_b128 v{AW}, {vr(tmp+4,4)} offset:{base*2048+1024}")

def set_srd(A, srd, ptr, nbytes):
    A(f"s_mov_b32 s{srd}, s{ptr}")
    A(f"s_and_b32 s{srd+1}, s{ptr+1}, 0xffff")
    A(f"s_mov_b32 s{srd+2}, {nbytes}")
    A(f"s_mov_b32 s{srd+3}, 0x20000")

def load_weights(A, place):
    VA, VB, TMP = 112, 113, 96
    A(f"v_lshrrev_b32 v114, 8, v{L16}")
    A(f"v_bfe_u32 v115, v{L16}, 4, 4")
    A("v_lshrrev_b32 v96, 1, v114"); A("v_lshlrev_b32 v96, 4, v96")
    A("v_and_b32 v97, 1, v114"); A("v_lshl_add_u32 v96, v97, 2, v96")
    A(f"s_lshl_b32 s{sTmp}, s{S_SLOT}, 8"); A(f"s_lshl_b32 s{sTmp2}, s{S_W}, 6"); A(f"s_add_u32 s{sTmp}, s{sTmp}, s{sTmp2}")
    A(f"v_lshlrev_b32 v{VA}, 13, v96"); A(f"v_lshl_add_u32 v{VA}, v115, 2, v{VA}"); A(f"v_add_u32 v{VA}, s{sTmp}, v{VA}")
    A(f"s_lshl_b32 s{sTmp}, s{S_SLOT}, 17"); A(f"s_lshl_b32 s{sTmp2}, s{S_W}, 8"); A(f"s_add_u32 s{sTmp}, s{sTmp}, s{sTmp2}")
    A(f"v_lshlrev_b32 v{VB}, 10, v96"); A(f"v_lshl_add_u32 v{VB}, v115, 3, v{VB}"); A(f"v_add_u32 v{VB}, s{sTmp}, v{VB}")
    groups = [(m, i) for m in 'qkv' for i in range(8)] + [('o', (T, kk)) for T in range(2) for kk in range(2)]
    ptr = {'q': S_WQ, 'k': S_WK, 'v': S_WV, 'o': S_WO}
    rowoff = lambda f, p, b: 32*f + 8*(p & 1) + 2*(p >> 1) + b
    cur = None
    def issue(gi):
        nonlocal cur
        m, x = groups[gi]
        if m != cur:
            set_srd(A, SRD_A if 'qkvo'.index(m) % 2 == 0 else SRD_B, ptr[m], 4*MB); cur = m
        srd = SRD_A if 'qkvo'.index(m) % 2 == 0 else SRD_B
        st = (gi % 3)*32
        if m != 'o':
            A(f"s_xor_b32 s{sTmp}, s{S_W}, {x>>1}"); A(f"s_lshl_b32 s{sTmp}, s{sTmp}, 20")
            for f in range(2):
                for p in range(4):
                    for b in range(2):
                        A(f"s_add_u32 s{sTmp2}, s{sTmp}, {((x&1)*64 + rowoff(f,p,b))*8192}")
                        A(f"buffer_load_dword v{st + (4*f+p)*2 + b}, v{VA}, {sr(srd,4)}, s{sTmp2} offen")
        else:
            T, kk = x
            for f in range(2):
                for p in range(4):
                    for b in range(2):
                        A(f"s_mov_b32 s{sTmp2}, {(kk*64 + rowoff(f,p,b))*1024 + T*128}")
                        A(f"buffer_load_dwordx2 {vr(st + ((4*f+p)*2 + b)*2, 2)}, v{VB}, {sr(srd,4)}, s{sTmp2} offen")
    def consume(gi):
        m, x = groups[gi]; st = (gi % 3)*32
        if m != 'o':
            for t in range(2):
                put_operand(A, place[(m, t, x)], [(st+2*j+1, st+2*j, S_PHI if t else S_PLO) for j in range(8)], TMP + 8*t)
        else:
            T, kk = x
            for t in range(4):
                put_operand(A, place[('o', 4*T+t, kk)], [(st+4*j+2+(t>>1), st+4*j+(t>>1), S_PHI if t & 1 else S_PLO) for j in range(8)], TMP + 8*(t & 1))
                if place[('o', 4*T+t, kk)][0] == 'l' and (t & 1): A("s_waitcnt lgkmcnt(0)")
        if m != 'o' and any(place[(m, t, x)][0] == 'l' for t in range(2)): A("s_waitcnt lgkmcnt(0)")
    n = len(groups)
    issue(0); issue(1); issue(2)
    for gi in range(n):
        left = min(n - 1 - gi, 2)
        A(f"s_waitcnt vmcnt({16*left})")
        consume(gi)
        if gi + 3 < n: issue(gi + 3)

def gray(A, d, x, t):
    A(f"v_lshrrev_b32 v{t}, 1, v{x}"); A(f"v_xor_b32 v{d}, v{x}, v{t}"); A(f"v_and_b32 v{d}, 1, v{d}")
    A(f"v_lshl_add_u32 v{d}, v{d}, 1, v{t}")

def setup(A, kmd=KMD, kmbase=KMR):
    A(f"v_and_b32 v1, 63, v0")
    A(f"v_lshlrev_b32 v{L16}, 4, v1")
    A("v_lshrrev_b32 v2, 4, v1")
    A("v_and_b32 v3, 15, v1")
    A("v_lshrrev_b32 v4, 2, v3")
    A("v_and_b32 v5, 1, v3")
    A("v_lshl_add_u32 v6, v4, 1, v5")
    A("v_bfe_u32 v7, v3, 1, 1")
    A("v_and_b32 v8, 3, v3")
    A(f"s_lshl_b32 s{sTmp}, s{S_W}, 11"); A(f"s_add_u32 s{sTmp}, s{sTmp}, {LB}")
    A(f"v_add_u32 v{ALW}, s{sTmp}, v{L16}")
    A(f"s_mul_i32 s{sTmp}, s{S_W}, {18*2048}")
    A(f"v_add_u32 v{AW}, s{sTmp}, v{L16}")
    A(f"s_lshr_b32 s{sTmp}, s{S_W}, 1"); A(f"s_lshl_b32 s{sTmp}, s{sTmp}, 11")
    A(f"s_and_b32 s{sTmp2}, s{S_W}, 1"); A(f"s_lshl_b32 s{sTmp2}, s{sTmp2}, 6"); A(f"s_add_u32 s{sTmp}, s{sTmp}, s{sTmp2}")
    A(f"s_add_u32 s{sTmp}, s{sTmp}, {L_Q}")
    gray(A, 9, 2, 10)
    A("v_xor_b32 v9, v9, v4"); A("v_lshlrev_b32 v9, 4, v9"); A("v_lshl_add_u32 v9, v2, 8, v9"); A("v_lshl_add_u32 v9, v8, 2, v9")
    A(f"v_add_u32 v{AQW}, s{sTmp}, v9"); A(f"v_add_u32 v{AKW}, {L_K-L_Q}, v{AQW}")
    gray(A, 9, 4, 10)
    A("v_xor_b32 v9, v9, v2"); A("v_lshlrev_b32 v9, 4, v9"); A("v_lshl_add_u32 v9, v6, 7, v9")
    A(f"v_add_u32 v{AQZ}, s{sTmp}, v9")
    A("v_lshl_add_u32 v9, v7, 6, v9"); A(f"v_add_u32 v{AQR}, {L_Q}, v9")
    A("v_and_b32 v11, 1, v4"); A("v_lshrrev_b32 v12, 1, v4"); A("v_lshl_add_u32 v11, v11, 1, v12")
    gray(A, 9, 11, 10)
    A("v_xor_b32 v9, v9, v2"); A("v_lshlrev_b32 v9, 4, v9"); A("v_lshl_add_u32 v9, v11, 8, v9"); A("v_lshl_add_u32 v9, v5, 7, v9")
    A("v_lshl_add_u32 v9, v7, 6, v9"); A(f"v_add_u32 v{AKR}, {L_K}, v9")
    A(f"v_mul_u32_u24 v9, 0xAAAA, v7"); A(f"v_add_u32 v{IDX}, 0x4444, v9")
    A("v_add_u32 v9, 0xC, v7"); A("v_mov_b32 v10, 0xE")
    A("v_cmp_gt_u32 vcc, 2, v2")
    A("v_cndmask_b32 v11, v10, v9, vcc"); A("v_cndmask_b32 v12, v9, v10, vcc")
    A(f"v_and_b32 v9, 0x0F0F, v{IDX}"); A("v_lshl_add_u32 v9, v11, 4, v9"); A(f"v_lshl_add_u32 v{IDX2}, v12, 12, v9")
    A(f"s_lshl_b32 s{sTmp}, s{S_W}, 9"); A(f"s_add_u32 s{sTmp}, s{sTmp}, {LB}")
    A("v_lshrrev_b32 v9, 3, v3"); A("v_lshlrev_b32 v9, 8, v9"); A("v_lshl_add_u32 v9, v2, 6, v9")
    A("v_and_b32 v10, 1, v4"); A("v_lshl_add_u32 v9, v10, 5, v9"); A("v_lshl_add_u32 v9, v8, 2, v9")
    A(f"v_add_u32 v{AOW}, s{sTmp}, v9")
    A(f"s_mov_b32 s{sMaskLo}, 0x33333333"); A(f"s_mov_b32 s{sMaskLo+1}, 0x33333333")
    A(f"s_mov_b32 s{sMaskHi}, 0xcccccccc"); A(f"s_mov_b32 s{sMaskHi+1}, 0xcccccccc")
    A("v_lshlrev_b32 v9, 13, v4"); A("v_lshl_add_u32 v9, v2, 6, v9"); A(f"v_lshl_add_u32 v{AHB}, v8, 4, v9")
    A(f"s_lshl_b32 s{sTmp}, s{S_LAYER}, 13"); A(f"s_add_u32 s{sTmp}, s{sTmp}, {HA}")
    A(f"s_lshl_b32 s{sTmp2}, s{S_W}, 11"); A(f"s_add_u32 s{sHAld}, s{sTmp}, s{sTmp2}")
    A(f"s_lshl_b32 s{sTmp2}, s{S_SLOT}, 8"); A(f"s_add_u32 s{sHAst}, s{sTmp}, s{sTmp2}")
    A(f"s_lshl_b32 s{sTmp}, s{S_LAYER}, 18"); A(f"s_add_u32 s{sTmp}, s{sTmp}, {HB}")
    A(f"s_add_u32 s{sHBst}, s{sTmp}, s{sTmp2}"); A(f"s_lshl_b32 s{sTmp2}, s{S_W}, 16"); A(f"s_add_u32 s{sHBst}, s{sHBst}, s{sTmp2}")
    A(f"s_lshl_b32 s{sTmp2}, s{S_SLOT}, 13"); A(f"s_add_u32 s{sHBld}, s{sTmp}, s{sTmp2}")
    A(f"s_lshl_b32 s{sTmp}, s{S_LAYER}, 5"); A(f"s_add_u32 s{sTmp}, s{sTmp}, s{S_SLOT}")
    A(f"s_lshl_b32 s{sKV}, s{sTmp}, 20"); A(f"s_add_u32 s{sKV}, s{sKV}, {KV}"); A(f"s_lshl_b32 s{sTmp2}, s{S_W}, 12"); A(f"s_add_u32 s{sKV}, s{sKV}, s{sTmp2}")
    A(f"s_mul_i32 s{sKM}, s{sTmp}, {kmd*4096}"); A(f"s_add_u32 s{sKM}, s{sKM}, {kmbase}"); A(f"s_lshl_b32 s{sTmp2}, s{S_W}, 10"); A(f"s_add_u32 s{sKM}, s{sKM}, s{sTmp2}")
    A(f"s_lshl_b32 s{sTmp}, s{sTmp}, 10"); A(f"s_lshl_b32 s{sTmp2}, s{S_W}, 2"); A(f"s_add_u32 s{sTmp}, s{sTmp}, s{sTmp2}")
    A(f"s_add_u32 s{sFKV}, s{sTmp}, {F_KV}")
    A(f"s_mov_b32 s{sCs}, 0x3e0293ee")
    A(f"s_mov_b32 s{sSpin}, 0")

def spin(A, back, abort):
    A(f"s_add_u32 s{sSpin}, s{sSpin}, 1"); A(f"s_cmp_lt_u32 s{sSpin}, {SPIN}")
    A(f"s_cbranch_scc1 {back}"); A(f"s_branch {abort}")

def smf(acc, a, loc):
    return f"v_smfmac_f32_16x16x64_bf16 {vr(acc,4)}, {vr(a,4)}, {vr(loc[1],8,loc[0])}, v{IDX}"
def mfma(d, a, b, c):
    return f"v_mfma_f32_16x16x32_bf16 {vr(d,4)}, {vr(a,4)}, {vr(b,4)}, {c if isinstance(c,str) else vr(c,4)}"
def mfma16(d, a, b, c):
    return f"v_mfma_f32_16x16x16_bf16 {vr(d,4)}, {vr(a,2)}, {vr(b,2)}, {c if isinstance(c,str) else vr(c,4)}"
def zero(A, base, n):
    for i in range(0, n, 2): A(f"v_mov_b64 {vr(base+i,2)}, 0")

def tt(f): return sum((f(i >> 2 & 1, i >> 1 & 1, i & 1) & 1) << i for i in range(8))
X2 = tt(lambda a, b, c: (a ^ c) | (b ^ c)); OA = tt(lambda a, b, c: (a | b) & c); OX = tt(lambda a, b, c: a | (b ^ c))

def init_regs(A):
    zero(A, QZ, 8); zero(A, VP, 16)
    for i in range(3): A(f"v_xor_b32 v{B[8]+i}, {2048*(i+1)}, v{ALW}")
    A(f"v_add_u32 v{B[8]+3}, {LB}, v{L16}")

def loop(A, place, oorder, fast, abort, done, stamps=False, tag='', only=None, pipeA=True, paceB=True, dB=0, dA=0, kmd=KMD, kmpos=0, epi=1, rstamp=False):
    W = sr(SRD_WS, 4)
    st = '' if fast else ' sc1'
    nst = [0]; sid = [0]
    def stamp():
        if stamps and (only is None or sid[0] in only or sid[0] == 7):
            A(f"s_memtime {sr(sSt + 2*nst[0], 2)}"); nst[0] += 1
            if rstamp and sid[0] == 6: nst[0] += 2
        sid[0] += 1
    def delay(n):
        n //= 4
        while n > 0:
            k = min(n, 16); A(f"s_nop {k-1}"); n -= k
    L = lambda s: f"LC{tag}_{s}"
    T0 = B[8]; LL = B[8] + 3
    AQ, AK, AV = B[0], B[2], B[0]
    qzone = [QF, KF, B[4], B[6]]
    qlds = sorted([o for o in place if o[0] == 'q' and place[o][0] == 'l'], key=lambda o: place[o][1])
    loc = dict(place)
    for k, o in enumerate(qlds): loc[o] = ('v', qzone[k])
    def prep_q():
        for k, o in enumerate(qlds):
            for hf in range(2): A(f"ds_read_b128 {vr(qzone[k]+4*hf,4)}, v{AW} offset:{place[o][1]*2048+1024*hf}")
    def next_addr():
        A(f"s_min_u32 s{sTmp}, s{sStep}, 61"); A(f"s_add_u32 s{sTmp}, s{sTmp}, 1")
        A(f"s_lshl_b32 s{sNF}, s{sTmp}, 4"); A(f"s_add_u32 s{sNF}, s{sNF}, s{sFKV}")
        A(f"s_buffer_load_dword s{sRdy}, {W}, s{sNF} glc")
        A(f"s_lshl_b32 s{sNK}, s{sTmp}, 14"); A(f"s_add_u32 s{sNK}, s{sNK}, s{sKV}")
        A(f"s_and_b32 s{sKMo}, s{sStep}, {kmd-1}"); A(f"s_lshl_b32 s{sKMo}, s{sKMo}, 12"); A(f"s_add_u32 s{sKMo}, s{sKMo}, s{sKM}")
        A(f"s_lshr_b32 s{sKMt}, s{sStep}, {kmd.bit_length()-1}"); A(f"s_add_u32 s{sKMt}, s{sKMt}, 1")
    def prep_z(): zero(A, B[0], 16)
    dma = [f"buffer_load_dwordx4 {vr(LZ+4*i,4)}, v{L16}, {W}, s{sNK} offen offset:{1024*i} sc1" for i in range(4)]
    def kv2reg():
        for i in range(4): A(f"v_mov_b64 {vr(KX+2*i,2)}, {vr(LZ+2*i,2)}")
        for i in range(4): A(f"v_mov_b64 {vr(VP+4*i,2)}, {vr(LZ+8+2*i,2)}")
    loc[('v', 0, 0)] = ('v', QF); loc[('v', 1, 0)] = ('v', KF)
    vrd = [f"ds_read_b128 {vr(loc[('v',t,0)][1]+4*hf,4)}, v{AW} offset:{place[('v',t,0)][1]*2048+1024*hf}" for t in range(2) for hf in range(2)]
    def kvslow(lab, back):
        A.label(lab)
        A(f"s_buffer_load_dword s{sRdy}, {W}, s{sNF} glc")
        A("s_waitcnt lgkmcnt(0)")
        A(f"s_cmp_eq_u32 s{sRdy}, 0"); A(f"s_cbranch_scc1 {lab}s")
        for x in dma: A(x)
        A("s_waitcnt vmcnt(0)")
        A(f"s_branch {back}")
        A.label(lab + "s")
        spin(A, lab, abort)
    A(f"s_mov_b32 s{sStep}, 0"); A(f"s_mov_b32 s{sTag}, 0")
    init_regs(A)
    A(f"s_mov_b32 s{sNF}, s{sFKV}"); A(f"s_mov_b32 s{sNK}, s{sKV}")
    kvslow(L("kv0"), L("kv0ok"))
    A.label(L("kv0ok"))
    kv2reg()
    X = B[2]
    A(f"v_bfe_u32 v{X}, v{L16}, 6, 2"); A(f"v_bfe_u32 v{X+1}, v{L16}, 4, 1"); A(f"v_lshl_add_u32 v{X}, v{X}, 1, v{X+1}"); A(f"v_lshlrev_b32 v{X}, 10, v{X}")
    A(f"v_lshrrev_b32 v{X+1}, 8, v{L16}"); A(f"v_lshl_add_u32 v{X}, v{X+1}, 5, v{X}")
    A(f"v_bfe_u32 v{X+1}, v{L16}, 5, 1"); A(f"v_lshl_add_u32 v{X}, v{X+1}, 4, v{X}")
    A(f"s_lshl_b32 s{sTmp}, s{S_W}, 8")
    set_srd(A, SRD_A, S_MEM0, 8192)
    A(f"buffer_load_dwordx4 {vr(MEM,4)}, v{X}, {sr(SRD_A,4)}, s{sTmp} offen")
    A(f"buffer_load_dwordx4 {vr(MEM+4,4)}, v{X}, {sr(SRD_A,4)}, s{sTmp} offen offset:128")
    next_addr(); prep_q()
    A("s_waitcnt vmcnt(0) lgkmcnt(0)")
    prep_z()
    A(f"s_branch {L('haveA')}")
    SB = MEM + 24
    def ldA(r):
        A(f"buffer_load_dwordx4 {vr(r,4)}, v{L16}, {W}, s{sHAld} offen sc1")
        A(f"buffer_load_dwordx4 {vr(r+4,4)}, v{L16}, {W}, s{sHAld} offen offset:1024 sc1")
    def chkA(r):
        A(f"v_bitop3_b32 v{MEM+8}, v{r}, v{r+2}, s{sTag} bitop3:{X2}")
        A(f"v_bitop3_b32 v{MEM+9}, v{r+4}, v{r+6}, s{sTag} bitop3:{X2}")
        A(f"v_bitop3_b32 v{MEM+8}, v{MEM+8}, v{MEM+9}, 1 bitop3:{OA}")
        A(f"v_cmp_ne_u32 vcc, 0, v{MEM+8}")
    P_ = lambda m, t, i, r=None: smf({'q': AQ, 'k': AK, 'v': AV}[m] + 4*t, (MEM + 4*i) if r is None else r + 4*i, loc[(m, t, i)])
    rd = [f"ds_read_b128 {vr(MEM+8+4*j,4)}, v{T0+(j>>1)} offset:{1024*(j&1)}" for j in range(6)]
    def own(r):
        A(P_('q', 0, 0, r))
        A(f"ds_write_b128 v{ALW}, {vr(r,4)}")
        A(P_('q', 1, 0, r))
        A(f"ds_write_b128 v{ALW}, {vr(r+4,4)} offset:1024")
        A(P_('q', 0, 1, r)); A(f"s_xor_b32 s{sTag}, s{sTag}, 1")
        A(P_('q', 1, 1, r))
        A(P_('k', 0, 0, r))
        A("s_waitcnt lgkmcnt(0)"); A("s_barrier")
        A(rd[0])
        A(P_('k', 1, 0, r)); A(rd[1]); A(rd[2])
        A(P_('k', 0, 1, r)); A(rd[3])
        A(P_('k', 1, 1, r))
    A(".p2align 6")
    A.label(L("step"))
    delay(dA)
    ldA(MEM)
    prep_z()
    A.label(L("pollA"))
    if pipeA:
        ldA(SB)
        A("s_waitcnt vmcnt(2)")
    else:
        A("s_waitcnt vmcnt(0)")
    chkA(MEM)
    A(f"s_cbranch_vccnz {L('tryB')}")
    A.label(L("haveA"))
    stamp()
    own(MEM)
    A.label(L("rest"))
    A("s_waitcnt lgkmcnt(3)"); A(P_('q', 0, 2)); A(P_('q', 1, 2))
    A("s_waitcnt lgkmcnt(2)"); A(P_('q', 0, 3)); A("s_waitcnt vmcnt(0)"); A(rd[4]); A(P_('q', 1, 3)); A(rd[5])
    for i in range(4, 8):
        A(f"s_waitcnt lgkmcnt({7-i})"); A(P_('q', 0, i)); A(dma[i-4]); A(P_('q', 1, i))
    stamp()
    kk = [P_('k', t, i) for i in range(2, 8) for t in range(2)]
    Y = B[6]
    def post(acc, y, d0, d1):
        return [f"v_add_f32 v{y}, v{acc}, v{acc+2}", f"v_add_f32 v{y+1}, v{acc+1}, v{acc+3}", f"v_add_f32 v{y+2}, v{acc+4}, v{acc+6}",
                f"v_add_f32 v{y+3}, v{acc+5}, v{acc+7}", f"v_cvt_pk_bf16_f32 v{d0}, v{y}, v{y+2}", f"v_cvt_pk_bf16_f32 v{d1}, v{y+1}, v{y+3}"]
    pq = post(AQ, Y, Y, Y+1)
    fill = {0: pq[0:2], 1: pq[2:4], 2: pq[4:6],
            3: [f"ds_write2_b32 v{AQW}, v{Y}, v{Y+1} offset0:0 offset1:32"],
            4: [f"s_mov_b64 exec, {sr(sMaskLo,2)}", f"ds_read_b128 {vr(QZ,4)}, v{AQZ}", "s_mov_b64 exec, -1"],
            5: [f"s_mov_b64 exec, {sr(sMaskHi,2)}", f"ds_read_b128 {vr(QZ+4,4)}, v{AQZ}", "s_mov_b64 exec, -1"],
            6: [vrd[0], f"v_mov_b64 {vr(AV,2)}, 0"], 7: [vrd[1], f"v_mov_b64 {vr(AV+2,2)}, 0"], 8: [vrd[2], f"v_mov_b64 {vr(AV+4,2)}, 0"],
            9: [vrd[3], "s_waitcnt lgkmcnt(4)", f"v_mov_b64 {vr(AV+6,2)}, 0"]}
    SP = B[4]; ONE = KX
    for i, m in enumerate(kk):
        if i == 10:
            A(mfma(SP, KX, QZ, "0"))
            A(mfma(SP, KX+4, QZ+4, SP))
            A(f"v_mov_b32 v{ONE}, 0x3f803f80"); A(f"v_mov_b32 v{ONE+1}, 0x3f803f80")
        A(m)
        if i == 10: A(f"v_mov_b32 v{ONE+2}, 0x3f803f80")
        if i == 11: A(f"v_mov_b32 v{ONE+3}, 0")
        for f in fill.get(i, []): A(f)
    stamp()
    vv = [P_('v', t, i) for i in (1, 2, 0, 3, 4, 5, 6, 7) for t in range(2)]
    KMB = B[3]
    pk = post(AK, Y, KMB, KMB+1)
    add = lambda d, a, b: f"v_add_f32 v{d}, v{a}, v{b}"
    pka = lambda d, a, b: f"v_pk_add_f32 {vr(d,2)}, {vr(a,2)}, {vr(b,2)}"
    olds = [o for o in oorder if place[o][0] == 'l']
    bufs = [MEM, MEM+8, MEM+16, MEM+24, QF, KF]
    def ord_(k, half): return f"ds_read_b128 {vr(bufs[k % 6]+4*half,4)}, v{AW} offset:{place[olds[k]][1]*2048+1024*half}"
    S = B[4]; SMM = B[2]; OA_, LA = QF, KF
    A(vv[0])
    A(f"ds_write_b128 v{ALW}, {vr(SP,4)} offset:{L_SX-LB}")
    A(vv[1])
    for x in pk: A(x)
    A(vv[2])
    A(f"ds_write2_b32 v{AKW}, v{KMB}, v{KMB+1} offset0:0 offset1:32")
    A(vv[3]); A("s_waitcnt lgkmcnt(2)"); A(f"v_mov_b64 {vr(ONE+4,2)}, {vr(ONE,2)}")
    A(vv[4]); A(f"v_mov_b64 {vr(ONE+6,2)}, {vr(ONE+2,2)}")
    A(vv[5])
    A("s_waitcnt lgkmcnt(0)"); A("s_barrier")
    A(f"ds_read_b128 {vr(KF,4)}, v{AKR}")
    A(vv[6])
    A(f"ds_read_b128 {vr(QF,4)}, v{AQR}")
    A(f"ds_read_b128 {vr(KF+4,4)}, v{AKR} offset:2048")
    A(vv[7])
    A(f"ds_read_b128 {vr(QF+4,4)}, v{AQR} offset:2048")
    A(f"ds_read_b128 {vr(B[5],4)}, v{T0} offset:{L_SX-LB}")
    A(vv[8])
    A(f"ds_read_b128 {vr(B[6],4)}, v{T0+1} offset:{L_SX-LB}")
    A(vv[9])
    A(f"ds_read_b128 {vr(B[7],4)}, v{T0+2} offset:{L_SX-LB}")
    A(vv[10])
    A("s_waitcnt lgkmcnt(5)")
    A(mfma(SMM, KF, QF, "0"))
    A(vv[11])
    A("s_waitcnt lgkmcnt(3)")
    A(mfma(SMM, KF+4, QF+4, SMM))
    A(f"v_mov_b64 {vr(OA_,2)}, 0"); A(f"v_mov_b64 {vr(OA_+2,2)}, 0")
    A(vv[12]); A(f"v_mov_b64 {vr(OA_+4,2)}, 0")
    A(vv[13]); A(f"v_mov_b64 {vr(OA_+6,2)}, 0")
    A(vv[14]); A(f"v_cndmask_b32 v{SMM+1}, v{SMM+1}, v{SMM+2}, {sr(sMaskHi,2)}")
    A(vv[15]); A("s_waitcnt lgkmcnt(0)"); A(ord_(0, 0))
    A(f"v_cndmask_b32 v{SMM}, v{SMM}, v{SMM+3}, {sr(sMaskHi,2)}")
    stamp()
    SM = SMM
    A(f"v_mov_b64 {vr(LA,2)}, 0"); A(f"v_mov_b64 {vr(LA+2,2)}, 0")
    A(f"v_add_f32_dpp v{SM}, v{SMM+1}, v{SMM} quad_perm:[2,3,0,1] row_mask:0xf bank_mask:0xf")
    A(pka(S, S, B[5])); A(pka(S+2, S+2, B[5]+2)); A(pka(B[6], B[6], B[7])); A(pka(B[6]+2, B[6]+2, B[7]+2))
    A(pka(S, S, B[6])); A(pka(S+2, S+2, B[6]+2))
    M_, T_ = B[6], B[6]+1
    PA = B[5]
    A(f"v_max3_f32 v{M_}, v{S}, v{S+1}, v{SM}")
    A(f"v_max3_f32 v{M_}, v{S+2}, v{S+3}, v{M_}")
    A(pka(AV, AV, AV+2)); A(pka(AV+4, AV+4, AV+6))
    A(f"v_max_f32_dpp v{T_}, v{M_}, v{M_} quad_perm:[2,3,0,1] row_mask:0xf bank_mask:0xf")
    A(f"v_max_f32_dpp v{M_}, v{M_}, v{M_} quad_perm:[2,3,0,1] row_mask:0xf bank_mask:0xf")
    A(f"v_cvt_pk_bf16_f32 v{VP+2}, v{AV}, v{AV+1}")
    A(f"v_cvt_pk_bf16_f32 v{VP+6}, v{AV}, v{AV+1}")
    A(f"v_permlane16_swap_b32 v{M_}, v{T_}")
    A(f"v_max_f32 v{M_}, v{M_}, v{T_}")
    A(f"v_mov_b32 v{T_}, v{M_}")
    A(f"v_cvt_pk_bf16_f32 v{VP+10}, v{AV+4}, v{AV+5}")
    A(f"v_cvt_pk_bf16_f32 v{VP+14}, v{AV+4}, v{AV+5}")
    A(f"v_permlane32_swap_b32 v{M_}, v{T_}")
    A(f"v_max_f32 v{M_}, v{M_}, v{T_}")
    A(f"v_mul_f32 v{M_}, s{sCs}, v{M_}")
    A(f"v_fma_f32 v{SM}, v{SM}, s{sCs}, -v{M_}")
    for j in range(4): A(f"v_fma_f32 v{S+j}, v{S+j}, s{sCs}, -v{M_}")
    A(f"v_exp_f32 v{SM}, v{SM}")
    for j in range(4): A(f"v_exp_f32 v{S+j}, v{S+j}")
    A(f"v_cvt_pk_bf16_f32 v{PA+1}, v{SM}, 0")
    A(f"v_cvt_pk_bf16_f32 v{PA+3}, v{SM}, 0")
    A(f"v_cvt_pk_bf16_f32 v{PA}, v{S}, v{S+1}")
    A(f"v_cvt_pk_bf16_f32 v{PA+2}, v{S+2}, v{S+3}")
    A(f"v_bfi_b32 v{KF+4}, 1, s{sKMt}, v{KMB}"); A(f"v_mov_b32 v{KF+5}, v{KMB+1}")
    pv = lambda acc, b: f"v_smfmac_f32_16x16x64_bf16 {vr(acc,4)}, {vr(PA,4)}, {vr(b,8)}, v{IDX2}"
    KS = KF + 4
    A(pv(LA, ONE)); A(ord_(0, 1)); A(ord_(1, 0)); A(f"v_mov_b32 v{KS+2}, v{VP+2}")
    A(pv(OA_, VP)); A(ord_(1, 1)); A(ord_(2, 0)); A(f"v_mov_b32 v{KS+3}, v{VP+10}")
    A(pv(OA_+4, VP+8))
    stamp()
    kmst = f"buffer_store_dwordx4 {vr(KS,4)}, v{L16}, {W}, s{sKMo} offen sc1"
    A(ord_(2, 1))
    if kmpos == 0: A(kmst)
    A(add(LA, LA, LA+2)); A(add(LA+1, LA+1, LA+3))
    A(f"v_rcp_f32 v{LA}, v{LA}"); A(f"v_rcp_f32 v{LA+1}, v{LA+1}")
    A(pka(OA_, OA_, OA_+2))
    A(f"v_mov_b64 {vr(OF,2)}, 0"); A(f"v_mov_b64 {vr(OF+2,2)}, 0")
    A(pka(OA_+4, OA_+4, OA_+6))
    A(f"v_pk_mul_f32 {vr(OA_,2)}, {vr(OA_,2)}, {vr(LA,2)}"); A(f"v_pk_mul_f32 {vr(OA_+4,2)}, {vr(OA_+4,2)}, {vr(LA,2)}")
    A(f"v_cvt_pk_bf16_f32 v{OF+4}, v{OA_}, v{OA_+4}"); A(f"v_cvt_pk_bf16_f32 v{OF+5}, v{OA_+1}, v{OA_+5}")
    z32 = lambda d: f"v_mfma_f32_32x32x16_bf16 {vr(d,16)}, {vr(OF,4)}, {vr(OF,4)}, 0"
    A(z32(B[0]))
    A(f"ds_write2_b32 v{AOW}, v{OF+4}, v{OF+5} offset0:0 offset1:4")
    A(ord_(3, 0)); A(ord_(3, 1))
    A(f"s_add_u32 s{sTmp2}, s{sHBst}, 0x8000")
    A(f"s_cmp_eq_u32 s{sStep}, 63")
    A(z32(B[4]))
    A("s_waitcnt lgkmcnt(2)")
    A("s_barrier")
    A(z32(B[0]))
    A(f"ds_read_b128 {vr(OF,4)}, v{LL}")
    A(f"ds_read_b128 {vr(OF+4,4)}, v{LL} offset:1024")
    if kmpos == 1: A(kmst)
    if kmpos == 2: A("s_nop 0")
    A(f"s_cbranch_scc1 {done}")
    A(f"v_mov_b32 v{AQW}, v{AQW}")
    A("s_waitcnt lgkmcnt(1)")
    stamp()
    ACC = [B[4], B[5], B[6], B[7], B[0], B[1], B[2], B[3]]
    q = ['OF1']
    todo = [(k, h) for k in range(4, len(olds)) for h in range(2)]
    def need(tok):
        nonlocal q
        if tok in q:
            i = q.index(tok); q = q[i+1:]
            A(f"s_waitcnt lgkmcnt({len(q)})")
    a = ACC
    cv = lambda d, x, y: f"v_cvt_pk_bf16_f32 v{d}, v{x}, v{y}"
    ad = lambda t: [add(a[t], a[t], a[t]+2), add(a[t]+1, a[t]+1, a[t]+3)]
    D0, D1 = a[0], a[4]
    g0 = ad(0) + ad(1) + [cv(D0+2, a[0]+1, a[1]+1), cv(D0, a[0], a[1])] + ad(2) + ad(3) + [cv(D0+1, a[2], a[3]), cv(D0+3, a[2]+1, a[3]+1)]
    ep = {4+i: [x] for i, x in enumerate(g0)}
    ep[15] += [f"v_bfi_b32 v{D0}, 1, s{sTag}, v{D0}", f"buffer_store_dwordx4 {vr(D0,4)}, v{AHB}, {W}, s{sHBst} offen{st}"]
    ep[15] += [pka(a[t], a[t], a[t]+2) for t in (4, 5)] + [cv(D1+2, a[4]+1, a[5]+1), cv(D1, a[4], a[5])] + [pka(a[t], a[t], a[t]+2) for t in (6, 7)]
    ep[15] += [f"v_bfi_b32 v{D1}, 1, s{sTag}, v{D1}", cv(D1+1, a[6], a[7]), cv(D1+3, a[6]+1, a[7]+1),
               f"buffer_store_dwordx4 {vr(D1,4)}, v{AHB}, {W}, s{sTmp2} offen{st}"]
    if epi == 1:
        ep = {4: ad(0)[:1], 5: ad(0)[1:], 6: ad(1), 7: [cv(D0+2, a[0]+1, a[1]+1), cv(D0, a[0], a[1])], 8: ad(2),
          9: [f"v_bfi_b32 v{D0}, 1, s{sTag}, v{D0}"] + ad(3)[:1], 10: ad(3)[1:] + [cv(D0+1, a[2], a[3])], 11: [cv(D0+3, a[2]+1, a[3]+1)],
          12: [f"buffer_store_dwordx4 {vr(D0,4)}, v{AHB}, {W}, s{sHBst} offen{st}"] + ad(4)[:1], 13: ad(4)[1:] + ad(5)[:1], 14: ad(5)[1:],
          15: [cv(D1+2, a[4]+1, a[5]+1), cv(D1, a[4], a[5])] + ad(6) + [f"v_bfi_b32 v{D1}, 1, s{sTag}, v{D1}", pka(a[7], a[7], a[7]+2),
               cv(D1+1, a[6], a[7]), cv(D1+3, a[6]+1, a[7]+1), f"buffer_store_dwordx4 {vr(D1,4)}, v{AHB}, {W}, s{sTmp2} offen{st}"]}
    k = 0
    for j, o in enumerate(oorder):
        if place[o][0] == 'l':
            A(smf(ACC[o[1]], OF + 4*o[2], ('v', bufs[k % 6]))); k += 1
        else:
            A(smf(ACC[o[1]], OF + 4*o[2], place[o]))
        n = 0
        while todo and n < (2 if j < 4 else 1) and todo[0][0] - 6 < k:
            A(ord_(*todo[0])); q.append(todo.pop(0)); n += 1
        if j + 1 < 16:
            nx = oorder[j+1]
            if j + 1 == 2: need('OF1')
            if place[nx][0] == 'l': need((k, 1))
        for x in ep.get(j, []): A(x)
    assert not todo
    stamp()
    A.label(L("tail"))
    A(f"s_cmp_eq_u32 s{sRdy}, 0"); A(f"s_cbranch_scc1 {L('kvw')}")
    A("s_waitcnt vmcnt(3)" if kmpos != 2 else "s_waitcnt vmcnt(2)")
    A.label(L("kvok"))
    kv2reg()
    prep_q()
    A(f"s_add_u32 s{sStep}, s{sStep}, 1")
    next_addr()
    A(f"s_cmp_lg_u32 s{S_W}, 0")
    A(f"s_cbranch_scc1 {L('join')}")
    SEL, RD, X = B[1], B[2], B[3]
    A(f"v_bfe_u32 v{X}, v{L16}, 5, 3"); A(f"v_and_b32 v{X+1}, 16, v{L16}"); A(f"v_mov_b32 v{X+2}, 0x3f80"); A(f"v_lshlrev_b32 v{X+2}, v{X+1}, v{X+2}")
    for j in range(4):
        A(f"v_cmp_eq_u32 vcc, {j}, v{X}"); A(f"v_cndmask_b32 v{SEL+j}, 0, v{X+2}, vcc")
    A(f"v_and_b32 v{X+1}, 0xe0, v{L16}")
    A(f"v_bfe_u32 v{X+2}, v{L16}, 8, 1"); A(f"v_lshl_add_u32 v{X+1}, v{X+2}, 4, v{X+1}")
    A(f"v_bfe_u32 v{X+2}, v{L16}, 4, 1"); A(f"v_lshl_add_u32 v{X+1}, v{X+2}, 3, v{X+1}")
    A(f"s_add_u32 s{sTmp2}, s{sHBld}, 4096")
    delay(dB)
    if rstamp: A(f"s_memtime {sr(sSt+2, 2)}")
    if paceB: A("s_waitcnt vmcnt(0)")
    if rstamp: A(f"s_memtime {sr(sSt+4, 2)}")
    A.label(L("pollB"))
    for c in range(8):
        A(f"buffer_load_dwordx4 {vr(MEM+4*c,4)}, v{L16}, {W}, s{sHBld if c < 4 else sTmp2} offen offset:{1024*(c&3)} sc1")
    A(f"v_mov_b32 v{X}, 0")
    for c in range(8):
        A(f"s_waitcnt vmcnt({7-c})")
        A(mfma(RD, SEL, MEM+4*c, "0" if c == 0 else RD))
        A(f"v_bitop3_b32 v{X}, v{X}, v{MEM+4*c}, s{sTag} bitop3:{OX}")
    A(f"v_and_b32 v{X}, 1, v{X}")
    A(f"v_cmp_ne_u32 vcc, 0, v{X}")
    A(f"s_cbranch_vccnz {L('retryB')}")
    A("s_mov_b32 exec_hi, 0")
    A(f"v_cvt_pk_bf16_f32 v{X+2}, v{RD}, v{RD+1}")
    A(f"v_cvt_pk_bf16_f32 v{X+3}, v{RD+2}, v{RD+3}")
    A(f"v_bfi_b32 v{X+2}, 1, s{sTag}, v{X+2}")
    A(f"buffer_store_dwordx2 {vr(X+2,2)}, v{X+1}, {W}, s{sHAst} offen{st}")
    A("s_mov_b64 exec, -1")
    A.label(L("join"))
    stamp()
    if stamps:
        A("s_waitcnt lgkmcnt(0)")
        n = nst[0]
        acc = sSt + 2*n + 2
        A(f"s_cmp_lt_u32 s{sStep}, 4"); A(f"s_cbranch_scc1 {L('nost')}")
        A(f"s_sub_u32 s{sTmp}, s{sSt}, s{sSt+2*n}"); A(f"s_add_u32 s{acc}, s{acc}, s{sTmp}")
        for i in range(1, n):
            A(f"s_sub_u32 s{sTmp}, s{sSt+2*i}, s{sSt+2*i-2}"); A(f"s_add_u32 s{acc+i}, s{acc+i}, s{sTmp}")
        A.label(L("nost"))
        A(f"s_mov_b32 s{sSt+2*n}, s{sSt+2*n-2}")
    A("s_barrier")
    A(f"s_branch {L('step')}")
    A.label(L("tryB"))
    ldA(MEM)
    if pipeA:
        A("s_waitcnt vmcnt(2)")
        chkA(SB)
        A(f"s_cbranch_vccnz {L('retryA')}")
        if stamps and (only is None or 0 in only): A(f"s_memtime {sr(sSt, 2)}")
        own(SB)
        A(f"s_branch {L('rest')}")
    A.label(L("retryA")); spin(A, L("pollA"), abort)
    A.label(L("retryB"))
    A(f"s_add_u32 s{sSpin}, s{sSpin}, 255")
    spin(A, L("pollB"), abort)
    A.label(L("kvw"))
    A("s_waitcnt vmcnt(0)")
    kvslow(L("kvw2"), L("kvok"))
    return sSt + 2*nst[0] + 2, nst[0]
```

```python
from asmlib import *
from layout import *
NAME = "interleave_layers__memory_aug_recurrent_mem_tr__dense_activation_relu__prompt_kernel"
SPIN = 1 << 18
S_XCC = 31
sA, sB, sC, sD, sE = 96, 97, 98, 99, 100

def set_srd(A, srd, ptr, nbytes):
    A(f"s_mov_b32 s{srd}, s{ptr}")
    A(f"s_and_b32 s{srd+1}, s{ptr+1}, 0xffff")
    A(f"s_mov_b32 s{srd+2}, {nbytes}")
    A(f"s_mov_b32 s{srd+3}, 0x20000")

def census(A, v0, abort, tag):
    set_srd(A, SRD_C, S_DBG, 256)
    A(f"v_mbcnt_lo_u32_b32 v{v0}, -1, 0"); A(f"v_mbcnt_hi_u32_b32 v{v0}, -1, v{v0}")
    A(f"v_lshlrev_b32 v{v0}, 2, v{v0}")
    A(f"s_mov_b32 s{sE}, 0")
    A.label(f"LCEN{tag}")
    A(f"buffer_load_dword v{v0+1}, v{v0}, {sr(SRD_C,4)}, 0 offen sc1")
    A("s_waitcnt vmcnt(0)")
    A(f"s_mov_b32 s{sA}, 0"); A(f"s_mov_b32 s{S_FAST}, 1")
    for x in range(8):
        A(f"v_readlane_b32 s{sB}, v{v0+1}, {8+x}")
        A(f"s_add_u32 s{sA}, s{sA}, s{sB}")
        A(f"s_cmp_eq_u32 s{sB}, 32"); A(f"s_cselect_b32 s{S_FAST}, s{S_FAST}, 0")
    A(f"v_readlane_b32 s{sB}, v{v0+1}, 25")
    A(f"s_cmp_eq_u32 s{sB}, 0"); A(f"s_cselect_b32 s{S_FAST}, s{S_FAST}, 0")
    A(f"s_cmp_ge_u32 s{sA}, 256"); A(f"s_cbranch_scc1 LCEND{tag}")
    A("s_sleep 4")
    A(f"s_add_u32 s{sE}, s{sE}, 1"); A(f"s_cmp_lt_u32 s{sE}, {SPIN}")
    A(f"s_cbranch_scc1 LCEN{tag}"); A(f"s_branch {abort}")
    A.label(f"LCEND{tag}")

def prologue(A, abort, end, init=True, force_slow=False):
    A("s_cmp_ge_u32 s2, 256"); A(f"s_cbranch_scc1 {end}")
    A(f"s_load_dwordx8 s[4:11], s[0:1], 0")
    A(f"s_load_dwordx4 s[12:15], s[0:1], 32")
    A(f"s_load_dwordx8 s[16:23], s[0:1], 64")
    A(f"s_load_dwordx2 s[24:25], s[0:1], 96")
    A(f"s_getreg_b32 s{S_XCC}, hwreg(HW_REG_XCC_ID)")
    A(f"s_and_b32 s{S_XCC}, s{S_XCC}, 15")
    A("v_lshrrev_b32 v1, 6, v0")
    A(f"v_readfirstlane_b32 s{S_W}, v1")
    A(f"s_mov_b32 s{S_PLO}, 0x05040100"); A(f"s_mov_b32 s{S_PHI}, 0x07060302")
    A("s_waitcnt lgkmcnt(0)")
    set_srd(A, SRD_WS, S_WS, WS_BYTES)
    set_srd(A, SRD_C, S_DBG, 256)
    C = sr(SRD_C, 4)
    A(f"s_lshr_b32 s{S_SLOT}, s2, 3")
    A(f"s_and_b32 s{S_GRP}, s{S_XCC}, 7")
    A(f"s_lshl_b32 s{sA}, 1, s{S_SLOT}"); A(f"v_mov_b32 v2, s{sA}")
    A(f"s_lshl_b32 s{sB}, s{S_GRP}, 2"); A(f"v_mov_b32 v3, s{sB}")
    A(f"s_cmp_lg_u32 s{S_W}, 0"); A("s_cbranch_scc1 LP_noclaim")
    A("s_mov_b64 exec, 1")
    A(f"buffer_atomic_or v2, v3, {C}, 0 offen sc0")
    A(f"s_lshr_b32 s{sC}, s{S_XCC}, 3")
    if force_slow: A(f"s_mov_b32 s{sC}, 1")
    A(f"s_cmp_eq_u32 s{sC}, 0"); A("s_cbranch_scc1 LP_nowe")
    A("v_mov_b32 v4, 1"); A("v_mov_b32 v5, 100")
    A(f"buffer_atomic_or v4, v5, {C}, 0 offen")
    A.label("LP_nowe")
    A("s_mov_b64 exec, -1")
    A.label("LP_noclaim")
    if init:
        per = ZEND // 256
        A(f"s_mul_i32 s{sC}, s2, {per}")
        A("v_lshlrev_b32 v6, 4, v0")
        for j in range(4): A(f"v_mov_b32 v{8+j}, 0")
        for j in range(per // 4096):
            A(f"buffer_store_dwordx4 v[8:11], v6, {sr(SRD_WS,4)}, s{sC} offen sc1")
            A(f"s_add_u32 s{sC}, s{sC}, 4096")
    A("s_waitcnt vmcnt(0)")
    A("s_barrier")
    A(f"s_cmp_lg_u32 s{S_W}, 0"); A("s_cbranch_scc1 LP_wait")
    A("s_mov_b64 exec, 1")
    A("v_mov_b32 v4, 1")
    A(f"buffer_atomic_add v4, v3, {C}, 0 offen offset:32")
    A("s_mov_b64 exec, -1")
    A(f"v_readfirstlane_b32 s{sB}, v2")
    A(f"s_and_b32 s{sB}, s{sB}, s{sA}")
    A(f"s_cmp_eq_u32 s{sB}, 0"); A("s_cbranch_scc1 LP_won")
    census(A, 12, abort, "P")
    A("s_mov_b64 exec, 1")
    A("v_mov_b32 v4, 1")
    A(f"buffer_atomic_add v4, v3, {C}, 0 offen offset:64 sc0")
    A("s_waitcnt vmcnt(0)")
    A("s_mov_b64 exec, -1")
    A(f"v_readfirstlane_b32 s{sA}, v4")
    A(f"v_readlane_b32 s{sB}, v13, s{S_GRP}")
    A(f"s_not_b32 s{sB}, s{sB}")
    A(f"s_bcnt1_i32_b32 s{sC}, s{sB}")
    A(f"s_cmp_lt_u32 s{sA}, s{sC}"); A("s_cbranch_scc1 LP_pick")
    A("s_mov_b64 exec, 1")
    A("v_mov_b32 v4, 1"); A("v_mov_b32 v5, 96")
    A(f"buffer_atomic_add v4, v5, {C}, 0 offen sc0")
    A("s_waitcnt vmcnt(0)")
    A("s_mov_b64 exec, -1")
    A(f"v_readfirstlane_b32 s{sA}, v4")
    A(f"s_mov_b32 s{S_GRP}, 0")
    A.label("LP_ov")
    A(f"s_add_u32 s{sD}, s{S_GRP}, 8")
    A(f"v_readlane_b32 s{sC}, v13, s{sD}")
    A(f"s_min_u32 s{sD}, s{sC}, 32"); A(f"s_sub_u32 s{sD}, 32, s{sD}")
    A(f"s_cmp_lt_u32 s{sA}, s{sD}"); A("s_cbranch_scc1 LP_ovf")
    A(f"s_sub_u32 s{sA}, s{sA}, s{sD}")
    A(f"s_add_u32 s{S_GRP}, s{S_GRP}, 1")
    A(f"s_cmp_lt_u32 s{S_GRP}, 8"); A("s_cbranch_scc1 LP_ov")
    A(f"s_branch {abort}")
    A.label("LP_ovf")
    A(f"v_readlane_b32 s{sB}, v13, s{S_GRP}")
    A(f"s_bcnt1_i32_b32 s{sD}, s{sB}")
    A(f"s_sub_u32 s{sC}, s{sC}, s{sD}"); A(f"s_add_u32 s{sA}, s{sA}, s{sC}")
    A(f"s_not_b32 s{sB}, s{sB}")
    A.label("LP_pick")
    A(f"s_ff1_i32_b32 s{S_SLOT}, s{sB}")
    A(f"s_cmp_eq_u32 s{sA}, 0"); A("s_cbranch_scc1 LP_won")
    A(f"s_bitset0_b32 s{sB}, s{S_SLOT}")
    A(f"s_sub_u32 s{sA}, s{sA}, 1")
    A("s_branch LP_pick")
    A.label("LP_won")
    A(f"s_lshl_b32 s{sA}, s{S_GRP}, 8"); A(f"s_or_b32 s{sA}, s{sA}, s{S_SLOT}")
    A(f"v_mov_b32 v4, s{sA}"); A("v_mov_b32 v5, 0")
    A("ds_write_b32 v5, v4"); A("s_waitcnt lgkmcnt(0)")
    A.label("LP_wait")
    A("s_barrier")
    A("v_mov_b32 v5, 0"); A("ds_read_b32 v4, v5"); A("s_waitcnt lgkmcnt(0)")
    A(f"v_readfirstlane_b32 s{sA}, v4")
    A(f"s_and_b32 s{S_SLOT}, s{sA}, 31"); A(f"s_lshr_b32 s{S_GRP}, s{sA}, 8"); A(f"s_and_b32 s{S_GRP}, s{S_GRP}, 7")
    A(f"s_lshr_b32 s{S_LAYER}, s{S_GRP}, 2")
    A("s_barrier")

def header(lds=163840):
    ref = open("interleave_layers__memory_aug_recurrent_mem_tr__dense_activation_relu__prompt.s.ref").read().split("\n")
    top = [l for l in ref if l.startswith(";") and "@launch" not in l]
    top.append(f"; @launch grid=(256,1,1) block=(256,1,1) lds={lds}")
    top += ['.amdgcn_target "amdgcn-amd-amdhsa--gfx950"', ".text", f".globl {NAME}", ".p2align 8", f".type {NAME},@function", f"{NAME}:"]
    return "\n".join(top) + "\n"

def footer():
    return "\n".join(['.section .rodata,"a"', ".p2align 6", f".amdhsa_kernel {NAME}",
        "  .amdhsa_next_free_vgpr 512", "  .amdhsa_next_free_sgpr 102", "  .amdhsa_accum_offset 256",
        "  .amdhsa_group_segment_fixed_size 0", "  .amdhsa_kernarg_size 104", "  .amdhsa_user_sgpr_count 2",
        "  .amdhsa_user_sgpr_kernarg_segment_ptr 1", "  .amdhsa_system_sgpr_workgroup_id_x 1",
        "  .amdhsa_float_denorm_mode_32 3", ".end_amdhsa_kernel"]) + "\n"

class Stamps:
    def __init__(self, A, on, acc, n, tmp, last):
        self.A, self.on, self.acc, self.n, self.tmp, self.last = A, on, acc, n, tmp, last
    def init(self):
        if not self.on: return
        for i in range(self.n): self.A(f"s_mov_b32 s{self.acc+i}, 0")
        self.A(f"s_memtime {sr(self.tmp,2)}"); self.A("s_waitcnt lgkmcnt(0)"); self.A(f"s_mov_b32 s{self.last}, s{self.tmp}")
    def __call__(self, i):
        if not self.on: return
        A = self.A
        A(f"s_memtime {sr(self.tmp,2)}"); A("s_waitcnt lgkmcnt(0)")
        A(f"s_sub_u32 s{self.tmp+1}, s{self.tmp}, s{self.last}"); A(f"s_add_u32 s{self.acc+i}, s{self.acc+i}, s{self.tmp+1}")
        A(f"s_mov_b32 s{self.last}, s{self.tmp}")
```

```python
from asmlib import *
from layout import *
from common import set_srd, Stamps
import chain
from chain import mfma, mfma16, tt

L_X = 0
L_B = 32768
L_KM = L_B + 3*24576
L_VM = L_KM + 2304
RS = 272
assert L_VM + 2048 <= 163840

FR = 0
AK, AV, AQ = 32, 48, 64
EP = 80
L16, AX0, AX1, AX2, AX3, ADM, AWR, ARD, AKMW, AKMR, AVMW, AVMR, LW = range(100, 113)
sQ, sA, sBq, sBa, sTmp, sTmp2, sSpin, sCs, sXN, sFXN, sKV, sFKV, sKM, sO, sFO, sTag = range(S_T0, S_T0 + 16)
sMask = 66
sFl = 84
SPIN = 1 << 22

def wloc(m, t, ks):
    i = ('kvq'.index(m)*16 + ks)*2 + t
    return ('a', 4*i) if i < 64 else ('v', 128 + 4*(i - 64))

def load_weights(A):
    VA, TMP = 98, 112
    A(f"v_lshrrev_b32 v96, 8, v{L16}"); A(f"v_bfe_u32 v97, v{L16}, 4, 4")
    A(f"s_lshl_b32 s{sTmp}, s{S_SLOT}, 8"); A(f"s_lshl_b32 s{sTmp2}, s{S_W}, 6"); A(f"s_add_u32 s{sTmp}, s{sTmp}, s{sTmp2}")
    A(f"v_lshlrev_b32 v{VA}, 16, v96"); A(f"v_lshl_add_u32 v{VA}, v97, 2, v{VA}"); A(f"v_add_u32 v{VA}, s{sTmp}, v{VA}")
    groups = [(m, i) for m in 'kvq' for i in range(8)]
    ptr = {'q': S_WQ, 'k': S_WK, 'v': S_WV}
    cur = None
    def issue(gi):
        nonlocal cur
        m, x = groups[gi]
        srd = SRD_A if 'kvq'.index(m) % 2 == 0 else SRD_B
        if m != cur: set_srd(A, srd, ptr[m], 4*MB); cur = m
        st = (gi % 3)*16
        for f in range(2):
            for j in range(8):
                A(f"s_mov_b32 s{sTmp2}, {(x*64 + 32*f + j)*8192}")
                A(f"buffer_load_dword v{st + 8*f + j}, v{VA}, {sr(srd,4)}, s{sTmp2} offen")
    def consume(gi):
        m, x = groups[gi]; st = (gi % 3)*16
        for f in range(2):
            for t in range(2):
                kind, base = wloc(m, t, 2*x + f)
                for p in range(4):
                    d = base + p if kind == 'v' else TMP + p
                    A(f"v_perm_b32 v{d}, v{st+8*f+2*p+1}, v{st+8*f+2*p}, s{S_PHI if t else S_PLO}")
                if kind == 'a':
                    for p in range(4): A(f"v_accvgpr_write_b32 a{base+p}, v{TMP+p}")
    n = len(groups)
    issue(0); issue(1); issue(2)
    for gi in range(n):
        A(f"s_waitcnt vmcnt({16*min(n - 1 - gi, 2)})")
        consume(gi)
        if gi + 3 < n: issue(gi + 3)

def xaddr(A, ax, adm, l16, g, n, t0, t1):
    for i in range(4):
        A(f"v_add_u32 v{t0}, {4*i}, v{g}"); A(f"v_xor_b32 v{t0}, v{t0}, v{n}"); A(f"v_lshlrev_b32 v{t0}, 4, v{t0}")
        A(f"v_lshl_add_u32 v{ax+i}, v{n}, 8, v{t0}")
    A(f"v_lshlrev_b32 v{t0}, 10, v{g}"); A(f"v_lshl_add_u32 v{adm}, v{n}, 4, v{t0}")

def setup0(A):
    A(f"v_and_b32 v1, 63, v0"); A(f"v_lshlrev_b32 v{L16}, 4, v1")

def setup(A, kmd=KMD, kmbase=KMR):
    A(f"v_lshrrev_b32 v2, 8, v{L16}"); A(f"v_bfe_u32 v3, v{L16}, 4, 4")
    xaddr(A, AX0, ADM, L16, 2, 3, 4, 5)
    A(f"s_lshl_b32 s{sTmp}, s{S_W}, 10"); A(f"v_add_u32 v{LW}, s{sTmp}, v{L16}")
    A(f"s_lshl_b32 s{sTmp}, s{S_W}, 6"); A(f"s_add_u32 s{sTmp}, s{sTmp}, {L_KM}")
    A(f"v_mul_u32_u24 v4, {2*RS}, v2"); A("v_lshl_add_u32 v4, v3, 2, v4"); A(f"v_add_u32 v{AKMW}, s{sTmp}, v4")
    A("v_lshrrev_b32 v4, 2, v3"); A("v_and_b32 v5, 1, v3"); A("v_lshl_add_u32 v4, v4, 1, v5")
    A(f"v_mul_u32_u24 v4, {RS}, v4"); A("v_lshl_add_u32 v4, v2, 4, v4"); A(f"v_add_u32 v{AKMR}, {L_KM}, v4")
    A(f"v_lshrrev_b32 v4, 1, v{LW}"); A(f"v_add_u32 v{AVMW}, {L_VM}, v4")
    A(f"s_lshr_b32 s{sTmp}, s{S_W}, 1"); A(f"s_lshl_b32 s{sTmp}, s{sTmp}, 10"); A(f"s_add_u32 s{sTmp}, s{sTmp}, {L_VM}")
    A(f"v_lshrrev_b32 v4, 1, v{L16}"); A(f"v_add_u32 v{AVMR}, s{sTmp}, v4")
    A(f"s_and_b32 s{sTmp}, s{S_W}, 1"); A(f"s_lshl_b32 s{sTmp}, s{sTmp}, 4")
    A(f"v_lshlrev_b32 v4, 2, v2"); A("v_sub_u32 v4, v3, v4"); A(f"v_add_u32 v4, s{sTmp}, v4")
    for rt in range(2):
        for r in range(4): A(f"v_cmp_le_i32 {sr(sMask + 2*(4*rt+r), 2)}, {16*rt + r}, v4")
    A(f"s_lshl_b32 s{sXN}, s{S_LAYER}, 21"); A(f"s_add_u32 s{sXN}, s{sXN}, {XN}"); A(f"s_lshl_b32 s{sTmp}, s{S_W}, 13"); A(f"s_add_u32 s{sXN}, s{sXN}, s{sTmp}")
    A(f"s_lshl_b32 s{sFXN}, s{S_LAYER}, 14"); A(f"s_add_u32 s{sFXN}, s{sFXN}, {F_XN}")
    A(f"s_lshl_b32 s{sTmp}, s{S_LAYER}, 5"); A(f"s_add_u32 s{sTmp}, s{sTmp}, s{S_SLOT}")
    A(f"s_lshl_b32 s{sKV}, s{sTmp}, 20"); A(f"s_add_u32 s{sKV}, s{sKV}, {KV}"); A(f"s_lshl_b32 s{sTmp2}, s{S_W}, 12"); A(f"s_add_u32 s{sKV}, s{sKV}, s{sTmp2}")
    A(f"s_mul_i32 s{sKM}, s{sTmp}, {kmd*4096}"); A(f"s_add_u32 s{sKM}, s{sKM}, {kmbase}")
    A(f"s_lshl_b32 s{sO}, s{sTmp}, 19"); A(f"s_add_u32 s{sO}, s{sO}, {O}")
    A(f"s_and_b32 s{sTmp2}, s{S_W}, 1"); A(f"s_lshl_b32 s{sTmp2}, s{sTmp2}, 12"); A(f"s_add_u32 s{sO}, s{sO}, s{sTmp2}")
    A(f"s_lshr_b32 s{sTmp2}, s{S_W}, 1"); A(f"s_lshl_b32 s{sTmp2}, s{sTmp2}, 11"); A(f"s_add_u32 s{sO}, s{sO}, s{sTmp2}")
    A(f"s_lshl_b32 s{sTmp2}, s{S_W}, 2")
    A(f"s_lshl_b32 s{sFKV}, s{sTmp}, 10"); A(f"s_add_u32 s{sFKV}, s{sFKV}, s{sTmp2}"); A(f"s_add_u32 s{sFKV}, s{sFKV}, {F_KV}")
    A(f"s_lshl_b32 s{sFO}, s{S_LAYER}, 15"); A(f"s_lshl_b32 s{sTmp}, s{S_SLOT}, 4"); A(f"s_add_u32 s{sFO}, s{sFO}, s{sTmp}")
    A(f"s_add_u32 s{sFO}, s{sFO}, s{sTmp2}"); A(f"s_add_u32 s{sFO}, s{sFO}, {F_O}")
    A(f"s_mov_b32 s{sCs}, 0x3e0293ee"); A(f"s_mov_b32 s{sSpin}, 0")

def spin(A, back, abort, s=sSpin):
    A(f"s_add_u32 s{s}, s{s}, 1"); A(f"s_cmp_lt_u32 s{s}, {SPIN}")
    A(f"s_cbranch_scc1 {back}"); A(f"s_branch {abort}")

def poll16(A, lab, off, want, abort, fl=sFl, sp=sSpin):
    A.label(lab)
    A(f"s_buffer_load_dwordx16 {sr(fl,16)}, {sr(SRD_WS,4)}, s{off} glc")
    A("s_waitcnt lgkmcnt(0)")
    for i in range(1, 8): A(f"s_and_b64 {sr(fl,2)}, {sr(fl,2)}, {sr(fl+2*i,2)}")
    A(f"s_and_b32 s{fl}, s{fl}, s{fl+1}")
    A(f"s_cmp_eq_u32 s{fl}, {want}"); A(f"s_cbranch_scc1 {lab}_ok")
    spin(A, lab, abort, sp)
    A.label(lab + "_ok")

def qkv(A, L, abort, ST):
    W = sr(SRD_WS, 4)
    A(f"s_lshl_b32 s{sTmp}, s{sQ}, 8"); A(f"s_add_u32 s{sTmp}, s{sTmp}, s{sFXN}")
    poll16(A, L("xn"), sTmp, "0x01010101", abort)
    ST(0)
    A(f"s_lshl_b32 s{sTmp}, s{sQ}, 15"); A(f"s_add_u32 s{sTmp}, s{sTmp}, s{sXN}")
    A(f"s_lshl_b32 s{sTmp2}, s{S_W}, 11")
    for q in range(4):
        for i in range(2):
            A(f"s_add_u32 m0, s{sTmp2}, {L_X + q*8192 + i*1024}")
            A(f"s_add_u32 s{sFl}, s{sTmp}, {q*256 + i*4096}")
            A(f"buffer_load_dwordx4 v{ADM}, {W}, s{sFl} offen sc1 lds")
    A(f"v_add_u32 v{AWR}, s{sBq}, v{LW}")
    def rd(ks, rt, j): return f"ds_read_b128 {vr(FR + 8*(j % 4) + 4*rt, 4)}, v{AX0 + (ks & 3)} offset:{L_X + (ks >> 2)*8192 + rt*4096}"
    def mm(m, ks, j, first):
        out = []
        for rt in range(2):
            for t in range(2):
                kind, base = wloc(m, t, ks); w = vr(base, 4, kind); x = vr(FR + 8*(j % 4) + 4*rt, 4)
                if m == 'v':
                    d = AV + 8*t + 4*rt; a, b = x, w
                else:
                    d = (AK if m == 'k' else AQ) + 8*rt + 4*t; a, b = w, x
                out.append(f"v_mfma_f32_16x16x32_bf16 {vr(d,4)}, {a}, {b}, {'0' if first else vr(d,4)}")
        return out
    steps = [('kv', ks) for ks in range(16)] + [('q', ks) for ks in range(16)]
    cv = lambda d, x, y: f"v_cvt_pk_bf16_f32 v{d}, v{x}, v{y}"
    ep = []
    A(f"s_lshl_b32 s{sTmp}, s{sQ}, 14"); A(f"s_add_u32 s{sTmp}, s{sTmp}, s{sKV}")
    for rt in range(2):
        e = EP + 4*rt
        ep += [cv(e + r, AK + 8*rt + r, AK + 8*rt + 4 + r) for r in range(4)]
        ep += [f"buffer_store_dwordx4 {vr(e,4)}, v{L16}, {W}, s{sTmp} offen offset:{1024*rt} sc1"]
        ep += [f"ds_write_b128 v{AWR}, {vr(e,4)} offset:{8192 + 4096*rt}"]
    for t in range(2):
        e = EP + 8 + 4*t; a = AV + 8*t
        ep += [cv(e, a, a+1), cv(e+1, a+4, a+5), cv(e+2, a+2, a+3), cv(e+3, a+6, a+7)]
        ep += [f"ds_write_b128 v{ARD}, {vr(e,4)} offset:{16384 + 1024*t}"]
        ep += [f"v_permlane16_swap_b32 v{e}, v{e+2}", f"v_permlane16_swap_b32 v{e+1}, v{e+3}", "s_nop 0",
               f"v_permlane32_swap_b32 v{e}, v{e+2}", f"v_permlane32_swap_b32 v{e+1}, v{e+3}"]
        ep += [f"buffer_store_dwordx4 {vr(e,4)}, v{L16}, {W}, s{sTmp} offen offset:{2048 + 1024*t} sc1"]
    A(f"s_lshl_b32 s{sTmp2}, s{S_W}, 10"); A(f"v_add_u32 v{ARD}, s{sTmp2}, v{AWR}")
    q = []
    def issue(j):
        ks = steps[j][1]
        if j < 16 and ks % 4 == 0:
            A(f"s_waitcnt vmcnt({6 - 2*(ks // 4)})"); A("s_barrier")
            if j == 0: ST(1)
        for rt in range(2):
            A(rd(ks, rt, j)); q.append(j)
    issue(0); issue(1)
    for j, (kind, ks) in enumerate(steps):
        last = max(i for i, x in enumerate(q) if x == j)
        q[:] = q[last+1:]
        A(f"s_waitcnt lgkmcnt({len(q)})")
        ms = (mm('k', ks, j, ks == 0) + mm('v', ks, j, ks == 0)) if kind == 'kv' else mm('q', ks, j, ks == 0)
        for i, m in enumerate(ms):
            A(m)
            if i == 0 and j + 2 < len(steps): issue(j + 2)
            if kind == 'q' and (j > 16 or i >= 2) and i > 0:
                n = 0
                while ep and n < 2:
                    x = ep.pop(0); A(x); n += 1
                    if x.startswith('ds_'): q.append(-1)
                    if x.startswith(('ds_', 'buffer_')): break
    assert not ep
    ST(2)
    A(f"s_lshl_b32 s{sTmp}, s{sQ}, 4"); A(f"s_add_u32 s{sTmp}, s{sTmp}, s{sFKV}")
    for rt in range(2):
        e = EP + 4*rt
        for r in range(4): A(cv(e + r, AQ + 8*rt + r, AQ + 8*rt + 4 + r))
        A(f"ds_write_b128 v{AWR}, {vr(e,4)} offset:{4096*rt}")
    A("s_waitcnt vmcnt(0)")
    A("s_mov_b64 exec, 1")
    A(f"buffer_store_dword v{AKMR}, off, {W}, s{sTmp} sc1")
    A("s_mov_b64 exec, -1")
    A(f"s_add_u32 s{sQ}, s{sQ}, 2")
    A(f"s_add_u32 s{sBq}, s{sBq}, 24576"); A(f"s_cmp_eq_u32 s{sBq}, {L_B + 3*24576}"); A(f"s_cselect_b32 s{sBq}, {L_B}, s{sBq}")
    A("s_waitcnt lgkmcnt(0)"); A("s_barrier")
    ST(3)

def att(A, L, abort, kmd, ST):
    W = sr(SRD_WS, 4)
    Q, K, V, KMF = 0, 16, 48, 16
    T, TM, R = 64, 72, 76
    VM, PX, PM, ONE, LA, OA = 80, 84, 88, 92, 96, 32
    M_, T_ = 113, 114
    NEG = 115
    A(f"s_and_b32 s{sTmp}, s{sA}, {kmd-1}"); A(f"s_lshl_b32 s{sTmp}, s{sTmp}, 12"); A(f"s_add_u32 s{sTmp}, s{sTmp}, s{sKM}")
    A(f"s_lshr_b32 s{sTag}, s{sA}, {kmd.bit_length()-1}"); A(f"s_add_u32 s{sTag}, s{sTag}, 1")
    ld = f"buffer_load_dwordx4 {vr(R,4)}, v{LW}, {W}, s{sTmp} offen sc1"
    A(ld)
    A(f"v_add_u32 v{ARD}, s{sBa}, v{L16}")
    A(f"s_and_b32 s{sTmp2}, s{S_W}, 1"); A(f"s_lshl_b32 s{sTmp2}, s{sTmp2}, 12"); A(f"v_add_u32 v{AWR}, s{sTmp2}, v{ARD}")
    for ks in range(4):
        A(f"ds_read_b128 {vr(Q+4*ks,4)}, v{AWR} offset:{1024*ks}")
        for rt in range(2): A(f"ds_read_b128 {vr(K+16*rt+4*ks,4)}, v{ARD} offset:{8192 + 4096*rt + 1024*ks}")
    A(f"s_lshr_b32 s{sTmp2}, s{S_W}, 1"); A(f"s_lshl_b32 s{sTmp2}, s{sTmp2}, 12"); A(f"v_add_u32 v{AWR}, s{sTmp2}, v{ARD}")
    A(f"v_mov_b32 v{NEG}, 0xff7fffff")
    for j in range(4): A(f"v_mov_b32 v{ONE+j}, 0x3f803f80")
    A(f"v_mov_b32 v{PM+1}, 0"); A(f"v_mov_b32 v{PM+2}, 0")
    for ks in range(4):
        A(f"s_waitcnt lgkmcnt({9 - 3*ks + min(ks,1)*0})") if False else None
    for ks in range(4):
        A(f"s_waitcnt lgkmcnt({9 - 3*ks})")
        for rt in range(2): A(mfma(T + 4*rt, K + 16*rt + 4*ks, Q + 4*ks, "0" if ks == 0 else T + 4*rt))
    for i in range(4): A(f"ds_read_b128 {vr(V+4*i,4)}, v{AWR} offset:{16384 + 1024*i}")
    for i in range(8): A(f"v_cndmask_b32 v{T+i}, v{NEG}, v{T+i}, {sr(sMask+2*i,2)}")
    A(f"v_max3_f32 v{M_}, v{T}, v{T+1}, v{T+2}"); A(f"v_max3_f32 v{M_}, v{M_}, v{T+3}, v{T+4}")
    A(f"v_max3_f32 v{M_}, v{M_}, v{T+5}, v{T+6}"); A(f"v_max_f32 v{M_}, v{M_}, v{T+7}")
    ST(4)
    A.label(L("kmw"))
    A("s_waitcnt vmcnt(0)")
    A(f"v_xor_b32 v{T_}, s{sTag}, v{R}"); A(f"v_and_b32 v{T_}, 1, v{T_}")
    A(f"v_cmp_ne_u32 vcc, 0, v{T_}")
    A(f"s_cbranch_vccz {L('kmok')}")
    A(ld)
    spin(A, L("kmw"), abort)
    A.label(L("kmok"))
    ST(5)
    A(f"ds_write2_b32 v{AKMW}, v{R}, v{R+1} offset0:0 offset1:{RS//4}")
    A(f"ds_write_b64 v{AVMW}, {vr(R+2,2)}")
    A("s_waitcnt lgkmcnt(0)"); A("s_barrier")
    for ks in range(4): A(f"ds_read_b128 {vr(KMF+4*ks,4)}, v{AKMR} offset:{64*ks}")
    for i in range(2): A(f"ds_read_b64 {vr(VM+2*i,2)}, v{AVMR} offset:{512*i}")
    for ks in range(4):
        A(f"s_waitcnt lgkmcnt({5 - ks})")
        A(mfma(TM, KMF + 4*ks, Q + 4*ks, "0" if ks == 0 else TM))
    A(f"s_lshl_b32 s{sTmp}, s{sA}, 13"); A(f"s_add_u32 s{sTmp}, s{sTmp}, s{sO}")
    A(f"s_lshl_b32 s{sTmp2}, s{sA}, 9"); A(f"s_add_u32 s{sTmp2}, s{sTmp2}, s{sFO}")
    A(f"v_max3_f32 v{M_}, v{M_}, v{TM}, v{TM+1}")
    A(f"v_mov_b32 v{T_}, v{M_}"); A(f"v_permlane16_swap_b32 v{M_}, v{T_}"); A(f"v_max_f32 v{M_}, v{M_}, v{T_}")
    A(f"v_mov_b32 v{T_}, v{M_}"); A(f"v_permlane32_swap_b32 v{M_}, v{T_}"); A(f"v_max_f32 v{M_}, v{M_}, v{T_}")
    A(f"v_mul_f32 v{M_}, s{sCs}, v{M_}")
    for i in range(10): A(f"v_fma_f32 v{T+i}, v{T+i}, s{sCs}, -v{M_}")
    for i in range(10): A(f"v_exp_f32 v{T+i}, v{T+i}")
    cv = lambda d, x, y: A(f"v_cvt_pk_bf16_f32 v{d}, v{x}, v{y}")
    cv(PX, T, T+1); cv(PX+1, T+4, T+5); cv(PX+2, T+2, T+3); cv(PX+3, T+6, T+7); cv(PM, TM, TM+1); cv(PM+3, TM, TM+1)
    A("s_waitcnt lgkmcnt(0)")
    A(mfma(LA, ONE, PX, "0"))
    for i in range(4): A(mfma(OA + 4*i, V + 4*i, PX, "0"))
    A(mfma16(LA, ONE, PM, LA))
    for i in range(4): A(mfma16(OA + 4*i, VM + 2*(i >> 1), PM + 2*(i & 1), OA + 4*i))
    A(f"v_rcp_f32 v{LA}, v{LA}")
    for h in range(2):
        o = OA + 8*h
        for j in range(4): A(f"v_pk_mul_f32 {vr(o+2*j,2)}, {vr(o+2*j,2)}, {vr(LA,2)} op_sel_hi:[1,0]")
        for r in range(4): cv(T + 4*h + r, o + r, o + 4 + r)
        A(f"buffer_store_dwordx4 {vr(T+4*h,4)}, v{L16}, {W}, s{sTmp} offen offset:{1024*h} sc1")
    A(f"v_mov_b32 v{T_}, 1")
    A(f"s_add_u32 s{sA}, s{sA}, 2")
    A(f"s_add_u32 s{sBa}, s{sBa}, 24576"); A(f"s_cmp_eq_u32 s{sBa}, {L_B + 3*24576}"); A(f"s_cselect_b32 s{sBa}, {L_B}, s{sBa}")
    A("s_barrier")
    ST(6)
    A("s_waitcnt vmcnt(0)")
    A("s_mov_b64 exec, 1")
    A(f"buffer_store_dword v{T_}, off, {W}, s{sTmp2} sc1")
    A("s_mov_b64 exec, -1")
    ST(7)

def loop(A, abort, done, kmd=KMD, stamps=False):
    L = lambda s: f"LH_{s}"
    ST = Stamps(A, stamps, 36, 8, 46, 82); ST.init()
    A(f"s_and_b32 s{sQ}, s{S_GRP}, 3"); A(f"s_sub_u32 s{sQ}, s{sQ}, 1"); A(f"s_mov_b32 s{sA}, s{sQ}")
    A(f"s_mov_b32 s{sBq}, {L_B}"); A(f"s_mov_b32 s{sBa}, {L_B}")
    A.label(L("top"))
    A(f"s_cmp_ge_u32 s{sQ}, 64"); A(f"s_cbranch_scc1 {L('att')}")
    qkv(A, L, abort, ST)
    A(f"s_lshl_b32 s{sTmp}, s{S_LAYER}, 1"); A(f"s_sub_u32 s{sTmp}, 6, s{sTmp}"); A(f"s_add_u32 s{sTmp}, s{sTmp}, s{sA}")
    A(f"s_cmp_lt_u32 s{sQ}, s{sTmp}"); A(f"s_cbranch_scc1 {L('top')}")
    A.label(L("att"))
    att(A, L, abort, kmd, ST)
    A(f"s_cmp_lt_u32 s{sA}, 64"); A(f"s_cbranch_scc1 {L('top')}")
    A(f"s_branch {done}")
```

```python
KB = 1024; MB = 1 << 20
NSEG = 64
F_XN = 0
F_XP = F_XN + 2*64*256
F_KV = F_XP + 2*64*256
F_KM = F_KV + 2*32*64*16
F_O  = F_KM + 2*32*64*16
HA   = F_O + 2*32*64*16
HB   = HA + 2*8*KB
PD = 4
P1   = HB + 2*256*KB
P2   = P1 + 2*PD*256*KB
KMD = 8
KMR  = P2 + 2*PD*512*KB
ZEND = KMR + 2*32*KMD*4*KB
ZEND = (ZEND + 256*4096 - 1)//(256*4096)*(256*4096)
XN = 10*MB
XP = XN + 4*MB
X1 = XP + 4*MB
X2 = X1 + 4*MB
KM = X2 + 2*MB
O  = KM + 16*MB
KV = O + 32*MB
DBG = KV + 64*MB
WS_BYTES = 256*MB
assert ZEND <= XN, ZEND

S_X, S_MEM0, S_WQ, S_WK, S_WV, S_WO = 4, 6, 8, 10, 12, 14
S_W1, S_W2, S_OUT, S_DBG, S_WS = 16, 18, 20, 22, 24
S_W, S_GRP, S_SLOT, S_LAYER, S_FAST = 26, 27, 28, 29, 30
SRD_WS = 32
SRD_A = 36
SRD_B = 40
SRD_C = 44
S_PLO, S_PHI = 48, 49
S_T0 = 50
if __name__ == "__main__":
    for k,v in list(globals().items()):
        if isinstance(v,int): print(k, hex(v))
```

```python
from asmlib import *
from layout import *
from common import set_srd, Stamps
from chain import mfma, tt, OX
import head
from head import xaddr

L_X = 0
L_H = 65536
L_ST = L_H + 6144
FR = 0
AC = 32
L16, AX0, AX1, AX2, AX3, ADM, APW, ARES, AXP, ASW, ASR, AHW, L4 = range(96, 109)
SEL = 112
RT = 120
RL = 160
EPI = 192
sS, sTmp, sTmp2, sSpin, sTag, sIn, sFIn, sPst, sPld, sRes, sOut, sXo, sFo, sJ, sPo, sPar = range(S_T0, S_T0 + 16)
sWm = 66
sPsel = 68
SPIN = 1 << 22

def spin(A, back, abort): head.spin(A, back, abort, sSpin)

def loader(A, groups, issue, consume):
    n = len(groups)
    for g in range(min(3, n)): issue(g)
    for gi in range(n):
        A(f"s_waitcnt vmcnt({16*min(n - 1 - gi, 2)})")
        consume(gi)
        if gi + 3 < n: issue(gi + 3)

def put4(A, dst, srcs, tmp):
    kind, base = dst
    for p, (r1, r0, sel) in enumerate(srcs): A(f"v_perm_b32 v{base+p if kind == 'v' else tmp+p}, v{r1}, v{r0}, s{sel}")
    if kind == 'a':
        for p in range(4): A(f"v_accvgpr_write_b32 a{base+p}, v{tmp+p}")

def wo_loc(t, ks): return ('a', 4*(4*ks + t))
def w1_loc(i, ks): return ('a', 4*(3*ks + i))
def w2_loc(T, t, u):
    i = (T*3 + u)*4 + t
    return ('a', 192 + 4*i) if i < 16 else ('v', 128 + 4*(i - 16))

def load_wo(A):
    VA, TMP = 110, 120
    A(f"v_lshrrev_b32 v108, 8, v{L16}"); A(f"v_bfe_u32 v109, v{L16}, 4, 4")
    A(f"s_lshr_b32 s{sTmp}, s{S_SLOT}, 1"); A(f"s_lshl_b32 s{sTmp}, s{sTmp}, 19")
    A(f"s_and_b32 s{sTmp2}, s{S_SLOT}, 1"); A(f"s_lshl_b32 s{sTmp2}, s{sTmp2}, 9"); A(f"s_add_u32 s{sTmp}, s{sTmp}, s{sTmp2}")
    A(f"s_lshl_b32 s{sTmp2}, s{S_W}, 7"); A(f"s_add_u32 s{sTmp}, s{sTmp}, s{sTmp2}")
    A(f"v_lshlrev_b32 v{VA}, 13, v108"); A(f"v_lshl_add_u32 v{VA}, v109, 3, v{VA}"); A(f"v_add_u32 v{VA}, s{sTmp}, v{VA}")
    set_srd(A, SRD_A, S_WO, 4*MB)
    def issue(gi):
        st = (gi % 3)*32
        for f in range(2):
            for j in range(8):
                A(f"s_mov_b32 s{sTmp2}, {(gi*64 + 32*f + j)*1024}")
                A(f"buffer_load_dwordx2 {vr(st + 16*f + 2*j, 2)}, v{VA}, {sr(SRD_A,4)}, s{sTmp2} offen")
    def consume(gi):
        st = (gi % 3)*32
        for f in range(2):
            for t in range(4):
                put4(A, wo_loc(t, 2*gi + f), [(st+16*f+4*p+2+(t >> 1), st+16*f+4*p+(t >> 1), S_PHI if t & 1 else S_PLO) for p in range(4)], TMP)
    loader(A, list(range(8)), issue, consume)

def load_ffn(A):
    VA, VB, TMP = 110, 111, 120
    BIG = 0x40000000
    A(f"v_lshrrev_b32 v108, 8, v{L16}"); A(f"v_bfe_u32 v109, v{L16}, 4, 4")
    A(f"s_and_b32 s{sJ}, s{S_SLOT}, 15")
    A(f"s_mul_i32 s{sTmp}, s{sJ}, 172")
    A(f"v_mul_u32_u24 v{VB}, {8*2752}, v108"); A(f"v_lshl_add_u32 v{VB}, v109, 2, v{VB}"); A(f"v_add_u32 v{VB}, s{sTmp}, v{VB}")
    A(f"s_lshr_b32 s{sTmp2}, s{S_W}, 1"); A(f"s_lshl_b32 s{sTmp}, s{sTmp2}, 7")
    A(f"v_add_u32 v{VA}, s{sTmp}, v{VB}"); A(f"v_add_u32 v{VB}, 64, v{VB}")
    A(f"s_cmp_eq_u32 s{sTmp2}, 0"); A(f"s_cselect_b32 s{sTmp}, 16, 11"); A(f"s_cselect_b32 s{sPsel}, s{S_PLO}, s{S_PHI}")
    A(f"v_mov_b32 v107, {BIG}")
    A(f"v_cmp_gt_u32 vcc, s{sTmp}, v109"); A(f"v_cndmask_b32 v{VA}, v107, v{VA}, vcc")
    set_srd(A, SRD_A, S_W1, 512*2752)
    def issue1(gi):
        st = (gi % 3)*32
        for j in range(8):
            A(f"s_mov_b32 s{sTmp2}, {(gi*32 + j)*2752}")
            A(f"buffer_load_dword v{st + j}, v{VA}, {sr(SRD_A,4)}, s{sTmp2} offen")
            A(f"buffer_load_dword v{st + 8 + j}, v{VB}, {sr(SRD_A,4)}, s{sTmp2} offen")
    def consume1(gi):
        st = (gi % 3)*32
        for t in range(2): put4(A, w1_loc(t, gi), [(st+2*p+1, st+2*p, S_PHI if t else S_PLO) for p in range(4)], TMP)
        put4(A, w1_loc(2, gi), [(st+8+2*p+1, st+8+2*p, sPsel) for p in range(4)], TMP)
    loader(A, list(range(16)), issue1, consume1)
    A(f"s_mul_i32 s{sTmp}, s{sJ}, {86*1024}"); A(f"s_lshl_b32 s{sTmp2}, s{S_W}, 8"); A(f"s_add_u32 s{sTmp}, s{sTmp}, s{sTmp2}")
    A(f"v_lshlrev_b32 v{VA}, 13, v108"); A(f"v_lshl_add_u32 v{VA}, v109, 3, v{VA}"); A(f"v_add_u32 v{VA}, s{sTmp}, v{VA}")
    A(f"v_cmp_gt_u32 vcc, 3, v108"); A(f"v_cndmask_b32 v{VB}, v107, v{VA}, vcc")
    A(f"v_cmp_gt_u32 vcc, 2, v108"); A(f"v_cndmask_b32 v106, v107, v{VA}, vcc")
    set_srd(A, SRD_B, S_W2, 1376*1024)
    def issue2(u):
        st = u*32
        for T in range(2):
            for p in range(4):
                for b in range(2):
                    h = 4*(p & 1) + (p >> 1) + 2*b
                    va = VA if u < 2 else (VB if h < 6 else 106)
                    A(f"s_mov_b32 s{sTmp2}, {(32*u + h)*1024 + 128*T}")
                    A(f"buffer_load_dwordx2 {vr(st + 16*T + 4*p + 2*b, 2)}, v{va}, {sr(SRD_B,4)}, s{sTmp2} offen")
    def consume2(u):
        st = u*32
        for T in range(2):
            for t in range(4):
                put4(A, w2_loc(T, t, u), [(st+16*T+4*p+2+(t >> 1), st+16*T+4*p+(t >> 1), S_PHI if t & 1 else S_PLO) for p in range(4)], TMP)
    loader(A, list(range(3)), issue2, consume2)

def setup0(A):
    A(f"v_and_b32 v1, 63, v0"); A(f"v_lshlrev_b32 v{L16}, 4, v1")

def setup_r(A):
    A(f"v_lshrrev_b32 v2, 8, v{L16}"); A(f"v_bfe_u32 v3, v{L16}, 4, 4")
    A(f"s_and_b32 s{sJ}, s{S_SLOT}, 15")
    A(f"v_lshrrev_b32 v{L4}, 2, v{L16}")
    A("v_lshrrev_b32 v4, 1, v3"); A(f"v_and_b32 v5, 16, v{L16}"); A("v_mov_b32 v6, 0x3f80"); A("v_lshlrev_b32 v6, v5, v6")
    for j in range(8):
        A(f"v_cmp_eq_u32 vcc, {j}, v4"); A(f"v_cndmask_b32 v{SEL+j}, 0, v6, vcc")
    A("v_and_b32 v4, 1, v2"); A(f"s_lshl_b32 s{sTmp}, s{sJ}, 1"); A(f"v_add_u32 v5, s{sTmp}, v4")
    A("v_lshrrev_b32 v6, 1, v2")
    A(f"s_lshl_b32 s{sTmp}, s{S_W}, 8")
    A("v_lshlrev_b32 v7, 10, v5"); A(f"v_add_u32 v7, s{sTmp}, v7")
    A("v_lshl_add_u32 v8, v6, 7, v7"); A(f"v_lshl_add_u32 v{ARES}, v3, 3, v8")
    A("v_lshrrev_b32 v8, 1, v3"); A("v_lshl_add_u32 v8, v6, 3, v8"); A("v_and_b32 v9, 15, v5"); A("v_xor_b32 v8, v8, v9")
    A("v_lshl_add_u32 v8, v8, 4, v7"); A("v_and_b32 v9, 1, v3"); A(f"v_lshl_add_u32 v{AXP}, v9, 3, v8")
    A("v_lshlrev_b32 v8, 5, v4"); A(f"v_add_u32 v{ASR}, {L_ST}, v8"); A(f"s_lshl_b32 s{sTmp}, s{S_W}, 3"); A(f"v_add_u32 v{ASW}, s{sTmp}, v{ASR}")
    A(f"s_mov_b32 s{sWm}, 0x00010001"); A(f"s_mov_b32 s{sWm+1}, 0")
    A(f"s_mov_b32 s{sSpin}, 0")

def setup(A, ffn):
    A(f"v_lshrrev_b32 v2, 8, v{L16}"); A(f"v_bfe_u32 v3, v{L16}, 4, 4")
    pz = 32*KB if ffn else 16*KB
    A(f"v_mul_u32_u24 v4, {2*pz}, v2"); A(f"v_lshl_add_u32 v{APW}, v3, 4, v4")
    base = P2 if ffn else P1
    A(f"s_mul_i32 s{sTmp}, s{S_LAYER}, {PD*16*pz}"); A(f"s_add_u32 s{sTmp}, s{sTmp}, {base}")
    A(f"s_mul_i32 s{sPld}, s{sJ}, {pz}"); A(f"s_add_u32 s{sPld}, s{sPld}, s{sTmp}"); A(f"s_mul_i32 s{sTmp2}, s{S_W}, {pz//4}"); A(f"s_add_u32 s{sPld}, s{sPld}, s{sTmp2}")
    A(f"s_lshl_b32 s{sFo}, s{sJ}, 2"); A(f"s_add_u32 s{sFo}, s{sFo}, s{S_W}")
    if ffn:
        xaddr(A, AX0, ADM, L16, 2, 3, 4, 5)
        A(f"s_and_b32 s{sTmp2}, s{S_W}, 1"); A(f"s_lshl_b32 s{sTmp2}, s{sTmp2}, 12")
        for i in range(4): A(f"v_add_u32 v{AX0+i}, s{sTmp2}, v{AX0+i}")
        A(f"s_and_b32 s{sTmp2}, s{S_W}, 1"); A(f"s_mul_i32 s{sTmp2}, s{sTmp2}, 3072"); A(f"s_add_u32 s{sTmp2}, s{sTmp2}, {L_H}")
        A(f"v_add_u32 v{AHW}, s{sTmp2}, v{L16}")
        A(f"s_lshl_b32 s{sPst}, s{S_W}, 13"); A(f"s_add_u32 s{sPst}, s{sPst}, s{sTmp}"); A(f"s_lshl_b32 s{sTmp2}, s{sJ}, 8"); A(f"s_add_u32 s{sPst}, s{sPst}, s{sTmp2}")
        A(f"s_lshl_b32 s{sTmp}, s{S_LAYER}, 21")
        A(f"s_add_u32 s{sIn}, s{sTmp}, {XP}"); A(f"s_lshl_b32 s{sTmp2}, s{S_W}, 13"); A(f"s_add_u32 s{sIn}, s{sIn}, s{sTmp2}")
        A(f"s_lshl_b32 s{sFIn}, s{S_LAYER}, 14"); A(f"s_add_u32 s{sFIn}, s{sFIn}, {F_XP}")
        A(f"s_add_u32 s{sRes}, s{sTmp}, {X1}")
        A(f"s_mov_b32 s{sXo}, {XN + 2*MB}"); A(f"s_add_u32 s{sFo}, s{sFo}, {F_XN + 64*256}")
        A(f"s_add_u32 s{sTmp}, s{S_WS}, {X2}"); A(f"s_addc_u32 s{sTmp2}, s{S_WS+1}, 0")
        A(f"s_cmp_eq_u32 s{S_LAYER}, 0"); A(f"s_cselect_b32 s{SRD_A}, s{sTmp}, s{S_OUT}"); A(f"s_cselect_b32 s{SRD_A+1}, s{sTmp2}, s{S_OUT+1}")
    else:
        A(f"s_and_b32 s{sTmp2}, s{S_SLOT}, 1"); A(f"s_lshl_b32 s{sTmp2}, s{sTmp2}, 2"); A(f"s_add_u32 s{sTmp2}, s{sTmp2}, s{S_W}")
        A(f"s_lshl_b32 s{sPst}, s{sTmp2}, 11"); A(f"s_add_u32 s{sPst}, s{sPst}, s{sTmp}")
        A(f"s_lshr_b32 s{sTmp2}, s{S_SLOT}, 1"); A(f"s_lshl_b32 s{sTmp}, s{sTmp2}, 8"); A(f"s_add_u32 s{sPst}, s{sPst}, s{sTmp}")
        A(f"s_lshl_b32 s{sIn}, s{S_LAYER}, 3"); A(f"s_add_u32 s{sIn}, s{sIn}, s{sTmp2}"); A(f"s_lshl_b32 s{sIn}, s{sIn}, 21"); A(f"s_add_u32 s{sIn}, s{sIn}, {O}")
        A(f"s_lshl_b32 s{sTmp}, s{S_W}, 11"); A(f"s_add_u32 s{sIn}, s{sIn}, s{sTmp}")
        A(f"s_lshl_b32 s{sFIn}, s{S_LAYER}, 15"); A(f"s_lshl_b32 s{sTmp}, s{sTmp2}, 6"); A(f"s_add_u32 s{sFIn}, s{sFIn}, s{sTmp}"); A(f"s_add_u32 s{sFIn}, s{sFIn}, {F_O}")
        A(f"v_and_b32 v{L4}, 63, v{L4}")
        A(f"v_mov_b32 v{ADM}, v{L16}")
        A(f"s_lshl_b32 s{sTmp}, s{S_LAYER}, 21")
        A(f"s_add_u32 s{sOut}, s{sTmp}, {X1}"); A(f"s_add_u32 s{sXo}, s{sTmp}, {XP}")
        A(f"s_lshl_b32 s{sFo}, s{sFo}, 2"); A(f"s_lshl_b32 s{sTmp}, s{S_LAYER}, 14"); A(f"s_add_u32 s{sFo}, s{sFo}, s{sTmp}"); A(f"s_add_u32 s{sFo}, s{sFo}, {F_XP}")
        A(f"s_add_u32 s{sTmp}, s{S_WS}, {X2}"); A(f"s_addc_u32 s{sTmp2}, s{S_WS+1}, 0")
        A(f"s_cmp_eq_u32 s{S_LAYER}, 0"); A(f"s_cselect_b32 s{SRD_A}, s{S_X}, s{sTmp}"); A(f"s_cselect_b32 s{SRD_A+1}, s{S_X+1}, s{sTmp2}")
    A(f"s_and_b32 s{SRD_A+1}, s{SRD_A+1}, 0xffff"); A(f"s_mov_b32 s{SRD_A+2}, {2*MB}"); A(f"s_mov_b32 s{SRD_A+3}, 0x20000")

def reduce(A, L, kind, fast, abort, ST=None):
    W = sr(SRD_WS, 4); RA = sr(SRD_A, 4)
    st = '' if fast else ' sc1'
    nl = {'wo': 4, 'ffn': 8, 'ln': 0}[kind]
    X, D, Y = RT, RT + 4, RL
    A(f"s_lshl_b32 s{sPo}, s{sS}, 15")
    if kind == 'ffn':
        A(f"s_add_u32 s{sTmp}, s{sPo}, s{sRes}"); A(f"buffer_load_dwordx2 {vr(X,2)}, v{ARES}, {W}, s{sTmp} offen sc1")
    else:
        A(f"buffer_load_dwordx2 {vr(X,2)}, v{ARES}, {RA}, s{sPo} offen sc1")
    if nl:
        pz = 16*(32*KB if kind == 'ffn' else 16*KB)
        A(f"s_and_b32 s{sTmp}, s{sS}, {PD-1}"); A(f"s_mul_i32 s{sTmp}, s{sTmp}, {pz}"); A(f"s_add_u32 s{sTmp}, s{sTmp}, s{sPld}")
        A(f"s_add_u32 s{sTmp2}, s{sTmp}, 4096")
        A(f"s_lshr_b32 s{sTag}, s{sS}, {PD.bit_length()-1}"); A(f"s_add_u32 s{sTag}, s{sTag}, 1")
        A("s_waitcnt vmcnt(1)")
        A.label(L("pp"))
        for c in range(nl):
            A(f"buffer_load_dwordx4 {vr(RL+4*c,4)}, v{L16}, {W}, s{sTmp if c < 4 else sTmp2} offen offset:{1024*(c&3)} sc1")
        A(f"v_mov_b32 v{X+2}, 0")
        for c in range(nl):
            A(f"s_waitcnt vmcnt({nl-1-c})")
            A(mfma(D, SEL + (4 if c >= nl//2 else 0), RL + 4*c, "0" if c == 0 else D))
            A(f"v_bitop3_b32 v{X+2}, v{X+2}, v{RL+4*c}, s{sTag} bitop3:{OX}")
        A(f"v_and_b32 v{X+2}, 1, v{X+2}")
        A(f"v_cmp_ne_u32 vcc, 0, v{X+2}")
        A(f"s_cbranch_vccz {L('pok')}")
        spin(A, L("pp"), abort)
        A.label(L("pok"))
        if ST: ST(4)
        A(f"v_lshlrev_b32 v{Y}, 16, v{X}"); A(f"v_and_b32 v{Y+1}, 0xffff0000, v{X}")
        A(f"v_lshlrev_b32 v{Y+2}, 16, v{X+1}"); A(f"v_and_b32 v{Y+3}, 0xffff0000, v{X+1}")
        A(f"v_cvt_pk_bf16_f32 v{X+2}, v{D}, v{D+1}"); A(f"v_cvt_pk_bf16_f32 v{X+3}, v{D+2}, v{D+3}")
        A(f"v_lshlrev_b32 v{D}, 16, v{X+2}"); A(f"v_and_b32 v{D+1}, 0xffff0000, v{X+2}")
        A(f"v_lshlrev_b32 v{D+2}, 16, v{X+3}"); A(f"v_and_b32 v{D+3}, 0xffff0000, v{X+3}")
        A(f"v_pk_add_f32 {vr(D,2)}, {vr(D,2)}, {vr(Y,2)}"); A(f"v_pk_add_f32 {vr(D+2,2)}, {vr(D+2,2)}, {vr(Y+2,2)}")
        A(f"v_cvt_pk_bf16_f32 v{X}, v{D}, v{D+1}"); A(f"v_cvt_pk_bf16_f32 v{X+1}, v{D+2}, v{D+3}")
        if kind == 'wo':
            A(f"s_add_u32 s{sTmp}, s{sPo}, s{sOut}"); A(f"buffer_store_dwordx2 {vr(X,2)}, v{ARES}, {W}, s{sTmp} offen{st}")
        else:
            A(f"buffer_store_dwordx2 {vr(X,2)}, v{ARES}, {RA}, s{sPo} offen sc1")
            A(f"s_cmp_lg_u32 s{S_LAYER}, 0"); A(f"s_cbranch_scc1 {L('rend')}")
    else:
        A("s_waitcnt vmcnt(0)")
    A(f"v_lshlrev_b32 v{D}, 16, v{X}"); A(f"v_and_b32 v{D+1}, 0xffff0000, v{X}")
    A(f"v_lshlrev_b32 v{D+2}, 16, v{X+1}"); A(f"v_and_b32 v{D+3}, 0xffff0000, v{X+1}")
    S, Q = Y, Y + 1
    A(f"v_add_f32 v{S}, v{D}, v{D+1}"); A(f"v_mul_f32 v{Q}, v{D}, v{D}")
    A(f"v_add_f32 v{Y+2}, v{D+2}, v{D+3}"); A(f"v_fmac_f32 v{Q}, v{D+1}, v{D+1}")
    A(f"v_add_f32 v{S}, v{S}, v{Y+2}"); A(f"v_fmac_f32 v{Q}, v{D+2}, v{D+2}"); A(f"v_fmac_f32 v{Q}, v{D+3}, v{D+3}")
    for r in (8, 4, 2, 1):
        A(f"v_add_f32_dpp v{S}, v{S}, v{S} row_ror:{r} row_mask:0xf bank_mask:0xf")
        A(f"v_add_f32_dpp v{Q}, v{Q}, v{Q} row_ror:{r} row_mask:0xf bank_mask:0xf")
    A(f"v_mov_b64 {vr(Y+2,2)}, {vr(S,2)}")
    A(f"v_permlane32_swap_b32 v{S}, v{Y+2}"); A(f"v_permlane32_swap_b32 v{Q}, v{Y+3}")
    A(f"v_pk_add_f32 {vr(S,2)}, {vr(S,2)}, {vr(Y+2,2)}")
    A(f"s_mov_b64 exec, {sr(sWm,2)}"); A(f"ds_write_b64 v{ASW}, {vr(S,2)}"); A("s_mov_b64 exec, -1")
    A("s_waitcnt lgkmcnt(0)"); A("s_barrier")
    A(f"ds_read_b128 {vr(Y+4,4)}, v{ASR}"); A(f"ds_read_b128 {vr(Y+8,4)}, v{ASR} offset:16")
    A(f"v_xor_b32 v{ASW}, 64, v{ASW}"); A(f"v_xor_b32 v{ASR}, 64, v{ASR}")
    A(f"s_add_u32 s{sTmp}, s{sPo}, s{sXo}")
    A(f"s_lshl_b32 s{sTmp2}, s{sS}, 8"); A(f"s_add_u32 s{sTmp2}, s{sTmp2}, s{sFo}")
    A("s_waitcnt lgkmcnt(0)")
    A(f"v_pk_add_f32 {vr(Y+4,2)}, {vr(Y+4,2)}, {vr(Y+6,2)}"); A(f"v_pk_add_f32 {vr(Y+8,2)}, {vr(Y+8,2)}, {vr(Y+10,2)}")
    A(f"v_pk_add_f32 {vr(S,2)}, {vr(Y+4,2)}, {vr(Y+8,2)}")
    A(f"v_mul_f32 v{S}, 0x3b000000, v{S}")
    A(f"v_mul_f32 v{Q}, 0x3b000000, v{Q}")
    A(f"v_fma_f32 v{Q}, -v{S}, v{S}, v{Q}"); A(f"v_max_f32 v{Q}, 0, v{Q}"); A(f"v_add_f32 v{Q}, 0x3727c5ac, v{Q}")
    A(f"v_rsq_f32 v{Q}, v{Q}")
    for i in range(4): A(f"v_sub_f32 v{D+i}, v{D+i}, v{S}")
    for i in range(4): A(f"v_mul_f32 v{D+i}, v{D+i}, v{Q}")
    A(f"v_cvt_pk_bf16_f32 v{X+2}, v{D}, v{D+1}"); A(f"v_cvt_pk_bf16_f32 v{X+3}, v{D+2}, v{D+3}")
    xs = st if kind == 'wo' else ' sc1'
    A(f"buffer_store_dwordx2 {vr(X+2,2)}, v{AXP}, {W}, s{sTmp} offen{xs}")
    A(f"v_mov_b32 v{Y}, 1")
    if ST: ST(5)
    A("s_waitcnt vmcnt(0)")
    A("s_mov_b64 exec, 1")
    A(f"buffer_store_{'dword' if kind == 'wo' else 'byte'} v{Y}, off, {W}, s{sTmp2}{xs}")
    A("s_mov_b64 exec, -1")
    A.label(L("rend"))

def ln_init(A, abort):
    L = lambda s: f"LN_{s}"
    set_srd(A, SRD_A, S_X, 2*MB)
    A(f"s_mov_b32 s{sXo}, {XN}"); A(f"s_lshl_b32 s{sFo}, s{sJ}, 2"); A(f"s_add_u32 s{sFo}, s{sFo}, s{S_W}"); A(f"s_add_u32 s{sFo}, s{sFo}, {F_XN}")
    A(f"s_lshr_b32 s{sS}, s{S_SLOT}, 4")
    A.label(L("top"))
    reduce(A, L, 'ln', False, abort)
    A(f"s_add_u32 s{sS}, s{sS}, 2"); A(f"s_cmp_lt_u32 s{sS}, 64"); A(f"s_cbranch_scc1 {L('top')}")

def chunks(acc_of, nT, tagreg):
    out = []; k = 0
    for T in range(nT):
        for rt in range(2):
            for rho in range(2):
                e = EPI + 4*k; k += 1
                a = [acc_of(T, rt, t) for t in range(4)]
                x = [f"v_cvt_pk_bf16_f32 v{e}, v{a[0]+2*rho}, v{a[1]+2*rho}", f"v_cvt_pk_bf16_f32 v{e+1}, v{a[2]+2*rho}, v{a[3]+2*rho}",
                     f"v_cvt_pk_bf16_f32 v{e+2}, v{a[0]+2*rho+1}, v{a[1]+2*rho+1}", f"v_cvt_pk_bf16_f32 v{e+3}, v{a[2]+2*rho+1}, v{a[3]+2*rho+1}",
                     f"v_bfi_b32 v{e}, 1, s{tagreg}, v{e}"]
                out.append((x, e, T, rt, rho))
    return out

def loop(A, ffn, fast, abort, done, tag, stamps=False):
    W = sr(SRD_WS, 4)
    st = '' if fast else ' sc1'
    L = lambda s: f"LP{tag}_{s}"
    ST = Stamps(A, stamps, 70, 8, 80, 82); ST.init()
    pz = 32*KB if ffn else 16*KB
    A(f"s_mov_b32 s{sS}, 0")
    A.label(L("top"))
    A(f"s_lshl_b32 s{sTmp}, s{sS}, {8 if ffn else 9}"); A(f"s_add_u32 s{sTmp}, s{sTmp}, s{sFIn}")
    A.label(L("in"))
    A(f"buffer_load_dword v{RT}, v{L4}, {W}, s{sTmp} offen sc1")
    A("s_waitcnt vmcnt(0)")
    A(f"v_cmp_eq_u32 vcc, 0, v{RT}")
    A(f"s_cbranch_vccz {L('inok')}")
    spin(A, L("in"), abort)
    A.label(L("inok"))
    ST(0)
    A(f"s_lshl_b32 s{sTmp}, s{sS}, {15 if ffn else 13}"); A(f"s_add_u32 s{sTmp}, s{sTmp}, s{sIn}")
    A(f"s_lshl_b32 s{sTmp2}, s{S_W}, 11")
    for q in range(4):
        for i in range(2):
            A(f"s_add_u32 m0, s{sTmp2}, {L_X + q*8192 + i*1024}")
            A(f"s_add_u32 s{sPo}, s{sTmp}, {(q*256 + i*4096) if ffn else (q*512*KB + i*1024)}")
            A(f"buffer_load_dwordx4 v{ADM}, {W}, s{sPo} offen sc1 lds")
    A(f"s_and_b32 s{sPar}, s{sS}, {PD-1}"); A(f"s_mul_i32 s{sPar}, s{sPar}, {16*pz}"); A(f"s_add_u32 s{sPar}, s{sPar}, s{sPst}")
    A(f"s_lshr_b32 s{sTag}, s{sS}, {PD.bit_length()-1}"); A(f"s_add_u32 s{sTag}, s{sTag}, 1")
    nr = 1 if ffn else 2
    def issue(ks):
        if ks % 4 == 0:
            A(f"s_waitcnt vmcnt({6 - 2*(ks // 4)})"); A("s_barrier")
            if ks == 0: ST(1)
        if ffn: A(f"ds_read_b128 {vr(FR + 4*(ks % 4), 4)}, v{AX0 + (ks & 3)} offset:{L_X + (ks >> 2)*8192}")
        else:
            for rt in range(2): A(f"ds_read_b128 {vr(FR + 8*(ks % 4) + 4*rt, 4)}, v{L16} offset:{L_X + (ks >> 2)*8192 + rt*4096 + (ks & 3)*1024}")
    ahead = 3 if ffn else 2
    for k in range(ahead): issue(k)
    for ks in range(16):
        A(f"s_waitcnt lgkmcnt({nr*min(ahead - 1, 15 - ks)})")
        if ffn:
            ms = [f"v_mfma_f32_16x16x32_bf16 {vr(AC+4*i,4)}, {vr(w1_loc(i,ks)[1],4,'a')}, {vr(FR+4*(ks%4),4)}, {'0' if ks == 0 else vr(AC+4*i,4)}" for i in range(3)]
        else:
            ms = [f"v_mfma_f32_16x16x32_bf16 {vr(AC+16*rt+4*t,4)}, {vr(FR+8*(ks%4)+4*rt,4)}, {vr(wo_loc(t,ks)[1],4,'a')}, {'0' if ks == 0 else vr(AC+16*rt+4*t,4)}"
                  for rt in range(2) for t in range(4)]
        for i, m in enumerate(ms):
            A(m)
            if i == 0 and ks + ahead < 16: issue(ks + ahead)
    def store(e, T, rt, rho):
        A(f"s_add_u32 s{sTmp}, s{sPar}, {(8*rt + rho)*pz + T*4096}")
        A(f"buffer_store_dwordx4 {vr(e,4)}, v{APW}, {W}, s{sTmp} offen{st}")
    if not ffn:
        ST(2)
        for x, e, T, rt, rho in chunks(lambda T, rt, t: AC + 16*rt + 4*t, 1, sTag):
            for i in x: A(i)
            store(e, T, rt, rho)
    else:
        H = FR + 24
        A(f"s_lshr_b32 s{sTmp}, s{S_W}, 1"); A(f"s_lshl_b32 s{sTmp2}, s{sTmp}, 11"); A(f"v_add_u32 v{RT}, s{sTmp2}, v{AHW}")
        A(f"s_lshl_b32 s{sTmp2}, s{sTmp}, 3"); A(f"v_add_u32 v{RT+1}, s{sTmp2}, v{AHW}")
        for i in range(12): A(f"v_max_f32 v{AC+i}, 0, v{AC+i}")
        for i in range(6): A(f"v_cvt_pk_bf16_f32 v{H+i}, v{AC+2*i}, v{AC+2*i+1}")
        A(f"ds_write_b128 v{RT}, {vr(H,4)}"); A(f"ds_write_b64 v{RT+1}, {vr(H+4,2)} offset:1024")
        A(f"v_add_u32 v{RT}, {L_H}, v{L16}")
        A("s_waitcnt lgkmcnt(0)"); A("s_barrier")
        for u in range(3):
            for rt in range(2): A(f"ds_read_b128 {vr(FR + 8*u + 4*rt, 4)}, v{RT} offset:{rt*3072 + u*1024}")
        ST(2)
        acc = lambda T, rt, t: AC + 32*T + 16*rt + 4*t
        ch = chunks(acc, 2, sTag)
        pend = []
        for T in range(2):
            for u in range(3):
                if T == 0: A(f"s_waitcnt lgkmcnt({4 - 2*u})")
                for rt in range(2):
                    for t in range(4):
                        k, b = w2_loc(T, t, u); d = vr(acc(T, rt, t), 4)
                        A(f"v_mfma_f32_16x16x32_bf16 {d}, {vr(FR+8*u+4*rt,4)}, {vr(b,4,k)}, {'0' if u == 0 else d}")
                        if T == 1 and (u > 0 or rt > 0 or t > 1):
                            n = 0
                            while pend and n < 2:
                                x = pend.pop(0); n += 1
                                if isinstance(x, tuple): store(*x); break
                                A(x)
            if T == 0:
                for x, e, T_, rt, rho in ch[:4]: pend += x + [(e, T_, rt, rho)]
        assert not pend
        for x, e, T_, rt, rho in ch[4:]:
            for i in x: A(i)
            store(e, T_, rt, rho)
    ST(3)
    reduce(A, L, 'ffn' if ffn else 'wo', fast, abort, ST)
    ST(6)
    A(f"s_add_u32 s{sS}, s{sS}, 1"); A(f"s_cmp_lt_u32 s{sS}, 64"); A(f"s_cbranch_scc1 {L('top')}")
    A(f"s_branch {done}")
```

```python
import sys
sys.path.insert(0, "gen")
from asmlib import *
from layout import *
import common, chain, head, post

def dump_sgprs(A, first, n, extra=()):
    A(f"s_lshl_b32 s96, s{S_GRP}, 5"); A(f"s_add_u32 s96, s96, s{S_SLOT}"); A("s_lshl_b32 s96, s96, 2"); A(f"s_add_u32 s96, s96, s{S_W}")
    A("s_lshl_b32 s96, s96, 7"); A(f"s_add_u32 s96, s96, {DBG}")
    A("s_mov_b64 exec, 1"); A("v_mov_b32 v1, 0")
    for i, r in enumerate(list(range(first, first + n)) + list(extra)):
        A(f"v_mov_b32 v2, s{r}")
        A(f"buffer_store_dword v2, v1, {sr(SRD_WS,4)}, s96 offen offset:{4*i}")
    A("s_waitcnt vmcnt(0)")

def build(roles=('chain',), init=True, stamps=False, force_slow=False, chain_kw={}, nq=4, kmfull=False):
    A = Asm()
    common.prologue(A, "L_abort", "L_end", init=init, force_slow=force_slow)
    A(f"s_and_b32 s96, s{S_GRP}, 3")
    A("s_cmp_eq_u32 s96, 0"); A("s_cbranch_scc1 L_chain")
    A("s_cmp_eq_u32 s96, 3"); A("s_cbranch_scc1 L_post")
    if 'head' in roles:
        head.setup0(A)
        head.load_weights(A)
        if kmfull: head.setup(A, 64, KM)
        else: head.setup(A)
        common.census(A, 0, "L_abort", "H")
        head.loop(A, "L_abort", "L_head_done", 64 if kmfull else KMD, stamps)
        A.label("L_head_done")
        if stamps: dump_sgprs(A, 36, 8, extra=(head.sSpin,))
    A("s_branch L_end")
    A.label("L_post")
    if 'post' in roles:
        post.setup0(A)
        A(f"s_cmp_eq_u32 s{S_LAYER}, 0"); A("s_cbranch_scc1 L_noln")
        if 'ln' in roles:
            post.setup_r(A)
            common.census(A, 0, "L_abort", "N")
            post.ln_init(A, "L_abort")
            A("s_waitcnt vmcnt(0)")
        A.label("L_noln")
        A(f"s_cmp_ge_u32 s{S_SLOT}, 16"); A("s_cbranch_scc1 L_ffn")
        for ffn in (False, True):
            nm = 'F' if ffn else 'W'
            if ffn: A.label("L_ffn")
            (post.load_ffn if ffn else post.load_wo)(A)
            post.setup_r(A); post.setup(A, ffn)
            common.census(A, 0, "L_abort", nm)
            A(f"s_cmp_eq_u32 s{S_FAST}, 0"); A(f"s_cbranch_scc1 L_{nm}slow")
            post.loop(A, ffn, True, "L_abort", "L_post_done", nm + 'f', stamps)
            A.label(f"L_{nm}slow")
            post.loop(A, ffn, False, "L_abort", "L_post_done", nm + 's', stamps)
        A.label("L_post_done")
        if stamps: dump_sgprs(A, 70, 8, extra=(post.sSpin,))
    A("s_branch L_end")
    A.label("L_chain")
    if 'chain' in roles:
        place, oorder = chain.placement(nq)
        if stamps:
            for r in range(chain.sSt, 96): A(f"s_mov_b32 s{r}, 0")
        if kmfull: chain_kw = dict(chain_kw, kmd=64); chain.setup(A, 64, KM)
        else: chain.setup(A)
        chain.load_weights(A, place)
        common.census(A, 0, "L_abort", "C")
        A(f"s_cmp_eq_u32 s{S_FAST}, 0"); A("s_cbranch_scc1 L_chain_slow")
        acc, n = chain.loop(A, place, oorder, True, "L_abort", "L_chain_done", stamps=stamps, tag='f', **chain_kw)
        A.label("L_chain_slow")
        chain.loop(A, place, oorder, False, "L_abort", "L_chain_done", stamps=stamps, tag='s', **chain_kw)
        A.label("L_chain_done")
        if stamps: dump_sgprs(A, acc, n, extra=(chain.sSpin, S_FAST))
    A("s_branch L_end")
    A.label("L_abort")
    common.set_srd(A, SRD_C, S_DBG, 256)
    A("s_mov_b64 exec, 1"); A("v_mov_b32 v1, 128"); A("v_mov_b32 v2, 1")
    A(f"buffer_atomic_add v2, v1, {sr(SRD_C,4)}, 0 offen")
    A.label("L_end")
    A("s_endpgm")
    probs = A.check_branches()
    for p in probs: print("HAZARD across branch:", p)
    return common.header() + A.text() + common.footer()

if __name__ == "__main__":
    open(sys.argv[1], "w").write(build(roles=("chain", "head", "post", "ln")))
```
